```python
import torch

def _softmax(x, axis=-1):
    return torch.softmax(x, dim=axis)
def _gelu(x):
    return torch.nn.functional.gelu(x, approximate="tanh")
def _silu(x):
    return torch.nn.functional.silu(x)
def _sigmoid(x):
    return torch.sigmoid(x)
def _layernorm(x, axis=-1, eps=1e-5):
    m = x.mean(dim=axis, keepdim=True)
    v = x.var(dim=axis, keepdim=True, unbiased=False)
    return (x - m) / torch.sqrt(v + eps)
def _scatter_add(tgt, idx, src, axis=0):
    return tgt.clone().index_add_(axis, idx, src)
def _segment_sum(src, seg, n):
    out = torch.zeros((n,) + src.shape[1:], dtype=src.dtype)
    return out.index_add_(0, seg, src)
def _pad(x, pw):
    flat = tuple(v for pair in reversed(pw) for v in pair)
    return torch.nn.functional.pad(x, flat)

kernel_name = 'sequential_preLN__ssm_conv_h3__mixer_channel_mlp__prompt'

def setup_inputs():

    _w = (lambda a: (lambda t: t.to(torch.bfloat16) if t.is_floating_point() else t)(torch.as_tensor(a)))
    def _A_setup():
        B, S, D = 1, 2048, 448
        ks = 4
        return {
            "q": _w((lambda *s: torch.randn(*s, dtype=torch.bfloat16) * 0.05)(B, S, D)),
            "k": _w((lambda *s: torch.randn(*s, dtype=torch.bfloat16) * 0.2)(B, S, D)),
            "v": _w((lambda *s: torch.randn(*s, dtype=torch.bfloat16) * 0.2)(B, S, D)),
            "shift_k": _w((lambda *s: torch.randn(*s, dtype=torch.bfloat16) * 0.2)(D, ks) * 0.5),
            "ssm_k": _w((lambda *s: torch.randn(*s, dtype=torch.bfloat16) * 0.8)(D, S) * (1.0 / S ** 0.5)),
            "ssm_D": _w((lambda *s: torch.randn(*s, dtype=torch.bfloat16) * 0.2)(D)),
        }
    _A_in = _A_setup()

    def _B_setup():
        B, S, D, F = 1, 2048, 448, 1792
        return {
            "x": _w((lambda *s: torch.randn(*s, dtype=torch.bfloat16) * 0.05)(B, S, D)),
            "w1": _w((lambda *s: torch.randn(*s, dtype=torch.bfloat16) * 0.8)(D, F) * (D ** -0.5)),
            "b1": _w((lambda *s: torch.randn(*s, dtype=torch.bfloat16) * 0.4)(F)),
            "w2": _w((lambda *s: torch.randn(*s, dtype=torch.bfloat16) * 0.05)(F, D) * (F ** -0.5)),
            "b2": _w((lambda *s: torch.randn(*s, dtype=torch.bfloat16) * 0.05)(D)),
        }
    _B_in = _B_setup()

    return {
        "A_q": _A_in["q"],
        "A_k": _A_in["k"],
        "A_v": _A_in["v"],
        "A_shift_k": _A_in["shift_k"],
        "A_ssm_k": _A_in["ssm_k"],
        "A_ssm_D": _A_in["ssm_D"],
        "B_x": _B_in["x"],
        "B_w1": _B_in["w1"],
        "B_b1": _B_in["b1"],
        "B_w2": _B_in["w2"],
        "B_b2": _B_in["b2"],
    }

def reference(A_q, A_k, A_v, A_shift_k, A_ssm_k, A_ssm_D, B_x, B_w1, B_b1, B_w2, B_b2):
    def _A_ref(q, k, v, shift_k, ssm_k, ssm_D):
        B, S, D = q.shape
        ks = shift_k.shape[-1]
        k_pad = _pad(k, ((0, 0), (ks - 1, 0), (0, 0)))
        k_shift = torch.zeros_like(k)
        for t in range(ks):
            k_shift = k_shift + k_pad[:, t:t + S, :] * shift_k[:, ks - 1 - t][None, None, :]
        kv = k_shift * v
        L = 2 * S
        kv_pad = _pad(kv, ((0, 0), (0, S), (0, 0)))
        kf_pad = _pad(ssm_k, ((0, 0), (0, S)))
        kv_f = (lambda x, axes=(-2,-1): torch.fft.rfft2(x.float(), dim=axes))(kv_pad[:, None, :, :], axes=(1, 2))
        kf_f = (lambda x, axes=(-2,-1): torch.fft.rfft2(x.float(), dim=axes))(kf_pad[:, None, :], axes=(1, 2))
        kf_f = (lambda x, *d: x.permute(*d))(kf_f, 1, 2, 0)
        y_f = kv_f * kf_f[None, :, :, :]
        y = (lambda x, s, axes=(-2,-1): torch.fft.irfft2(x, s=s, dim=axes).to(torch.bfloat16))(y_f, (1, L), axes=(1, 2))[:, 0, :S, :]
        y = y + kv * ssm_D[None, None, :]
        return q * y

    def _B_ref(x, w1, b1, w2, b2):
        y = _layernorm(x, axis=-1)
        h = _gelu(torch.einsum("bsd,df->bsf", y, w1) + b1)
        return torch.einsum("bsf,fd->bsd", h, w2) + b2

    x = A_q
    h = x + _A_ref(_layernorm(x, axis=-1), A_k, A_v, A_shift_k, A_ssm_k, A_ssm_D)
    h2 = h + _B_ref(_layernorm(h, axis=-1), B_w1, B_b1, B_w2, B_b2)
    return h2
```

```python
class Asm:
    def __init__(self):
        self.lines = []
        self.nlab = 0
    def __call__(self, s=""):
        for l in s.strip("\n").split("\n"):
            l = l.strip()
            if l == "": continue
            if l.endswith(":") and " " not in l:
                self.lines.append(l)
            else:
                self.lines.append("    " + l)
    def c(self, s):
        self.lines.append("    ; " + s)
    def label(self, base="L"):
        self.nlab += 1
        return f"{base}_{self.nlab}"
    def text(self):
        return "\n".join(self.lines) + "\n"

def v(a, n=1):
    return f"v{a}" if n == 1 else f"v[{a}:{a+n-1}]"
def s(a, n=1):
    return f"s{a}" if n == 1 else f"s[{a}:{a+n-1}]"
def f2u(x):
    import struct
    return struct.unpack("<I", struct.pack("<f", x))[0]
def fhex(x):
    return hex(f2u(x))

def kernel_header(name):
    return f""".text
.globl {name}
.p2align 8
.type {name},@function
{name}:
"""
def kernel_desc(name, vgpr, sgpr=102, acc=None):
    acc = acc if acc is not None else (vgpr + 3)//4*4
    return f""".section .rodata,"a"
.p2align 6
.amdhsa_kernel {name}
  .amdhsa_next_free_vgpr {vgpr}
  .amdhsa_next_free_sgpr {sgpr}
  .amdhsa_accum_offset {acc}
  .amdhsa_group_segment_fixed_size 0
  .amdhsa_kernarg_size 112
  .amdhsa_user_sgpr_count 2
  .amdhsa_user_sgpr_kernarg_segment_ptr 1
  .amdhsa_system_sgpr_workgroup_id_x 1
.end_amdhsa_kernel
"""
```

```python
import sys
from asmlib import *

S, D, F = 2048, 448, 1792
WS_T, WS_H, WS_HID = 0, 0x600000, 0x800000
WS_BYTES = 0x1000000
NBX = S*D*2

def srd(A, r, lo, hi, nbytes):
    A(f"""s_mov_b32 s{r}, s{lo}
    s_and_b32 s{r+1}, s{hi}, 0xffff
    s_mov_b32 s{r+2}, {nbytes}
    s_mov_b32 s{r+3}, 0x20000""")

def k1():
    A = Asm(); end = "K1_END"
    A(f"""s_cmp_ge_u32 s2, 256
    s_cbranch_scc1 {end}
    s_load_dwordx4 s[4:7], s[0:1], 0
    s_load_dwordx4 s[8:11], s[0:1], 16
    s_load_dwordx2 s[12:13], s[0:1], 104
    s_and_b32 s36, s2, 7
    s_lshr_b32 s37, s2, 3
    v_lshrrev_b32 v1, 4, v0
    v_and_b32 v2, 15, v0
    v_lshrrev_b32 v4, 6, v0
    s_lshl_b32 s39, s37, 6
    v_readfirstlane_b32 s38, v4
    v_lshl_add_u32 v3, v2, 2, s39
    v_mul_u32_u24 v3, 896, v3
    s_mul_i32 s40, s36, 112
    v_lshl_add_u32 v5, v1, 2, s40
    v_add_u32 v3, v3, v5
    v_add_u32 v6, {(-2688)&0xffffffff}, v3
    v_add_u32 v7, {(-1792)&0xffffffff}, v3
    v_add_u32 v8, {(-896)&0xffffffff}, v3
    s_mul_i32 s41, s36, 28
    v_add_u32 v9, s41, v1
    v_lshlrev_b32 v21, 4, v9
    v_and_b32 v22, 63, v0
    v_lshrrev_b32 v23, 3, v22
    s_lshl_b32 s42, s38, 3
    s_add_u32 s42, s42, s39
    v_add_u32 v23, s42, v23
    v_mul_u32_u24 v23, 896, v23
    v_and_b32 v22, 7, v22
    v_lshl_add_u32 v23, v22, 4, v23
    s_waitcnt lgkmcnt(0)""")
    srd(A, 16, 4, 5, NBX); srd(A, 20, 6, 7, NBX); srd(A, 24, 8, 9, NBX); srd(A, 28, 10, 11, D*4*2); srd(A, 32, 12, 13, WS_BYTES)
    A(f"""s_cmp_eq_u32 s38, 7
    s_cbranch_scc1 K1_ST
    buffer_load_dword v10, v6, s[20:23], 0 offen
    buffer_load_dword v11, v7, s[20:23], 0 offen
    buffer_load_dword v12, v8, s[20:23], 0 offen""")
    for t in range(4): A(f"buffer_load_dword v{13+t}, v3, s[20:23], 0 offen offset:{896*t}")
    for t in range(4): A(f"buffer_load_dword v{17+t}, v3, s[24:27], 0 offen offset:{896*t}")
    A("buffer_load_dwordx4 v[24:27], v21, s[28:31], 0 offen")
    for t in range(4): A(f"buffer_load_dword v{28+t}, v3, s[16:19], 0 offen offset:{896*t}")
    A("K1_ST:")
    for i in range(7): A(f"buffer_load_dwordx4 v[{32+4*i}:{35+4*i}], v23, s[16:19], 0 offen offset:{128*i}")
    A(f"""s_mov_b32 s43, 0xffff0000
    s_mov_b32 s44, 4096
    s_mov_b32 s45, 8192
    s_mov_b32 s46, 12288
    s_mov_b32 s47, 16384
    s_mov_b32 s48, 20480
    v_mul_u32_u24 v9, 24576, v9
    s_lshl_b32 s49, s37, 7
    v_lshl_add_u32 v68, v2, 3, s49
    v_add_u32 v68, v68, v9
    v_xor_b32 v69, 8, v68
    s_cmp_eq_u32 s38, 7
    s_cbranch_scc1 K1_ST2
    s_waitcnt vmcnt(11)""")
    for i in range(4):
        A(f"v_lshlrev_b32 v{60+2*i}, 16, v{24+i}\nv_and_b32 v{61+2*i}, s43, v{24+i}")
    for i in range(7):
        A(f"v_lshlrev_b32 v{70+i}, 16, v{10+i}\nv_and_b32 v{80+i}, s43, v{10+i}")
    for t in range(4):
        A(f"""v_mul_f32 v{90+t}, v{73+t}, v60
        v_mul_f32 v{94+t}, v{83+t}, v64""")
        for j in range(1, 4):
            A(f"""v_fmac_f32 v{90+t}, v{73+t-j}, v{60+j}
            v_fmac_f32 v{94+t}, v{83+t-j}, v{64+j}""")
        A(f"""v_lshlrev_b32 v98, 16, v{17+t}
        v_and_b32 v99, s43, v{17+t}
        v_mul_f32 v{90+t}, v{90+t}, v98
        v_mul_f32 v{94+t}, v{94+t}, v99""")
    A("""v_cvt_pk_bf16_f32 v70, v93, v92
    v_cvt_pk_bf16_f32 v71, v91, v90
    v_cvt_pk_bf16_f32 v72, v97, v96
    v_cvt_pk_bf16_f32 v73, v95, v94
    buffer_store_dwordx2 v[70:71], v69, s[32:35], 0 offen
    buffer_store_dwordx2 v[72:73], v69, s[32:35], s44 offen
    s_waitcnt vmcnt(2)
    s_branch K1_ST3
    K1_ST2:
    s_waitcnt vmcnt(0)
    K1_ST3:
    s_mov_b32 s50, 0x3f803f80
    v_mov_b32 v100, 0
    v_mov_b32 v101, 0
    v_mov_b32 v102, 0
    v_mov_b32 v103, 0""")
    for i in range(28):
        A(f"v_dot2_f32_bf16 v{100+(i&1)}, v{32+i}, s50, v{100+(i&1)}")
        A(f"v_dot2_f32_bf16 v{102+(i&1)}, v{32+i}, v{32+i}, v{102+(i&1)}")
    A("""s_nop 2
    v_add_f32 v100, v100, v101
    v_add_f32 v102, v102, v103
    s_nop 1""")
    for dpp in ("quad_perm:[1,0,3,2]", "quad_perm:[2,3,0,1]", "row_half_mirror"):
        A(f"""v_add_f32_dpp v100, v100, v100 {dpp} row_mask:0xf bank_mask:0xf
        v_add_f32_dpp v102, v102, v102 {dpp} row_mask:0xf bank_mask:0xf
        s_nop 1""")
    A(f"""v_mul_f32 v100, {fhex(1/448)}, v100
    v_mul_f32 v102, {fhex(1/448)}, v102
    v_fma_f32 v102, -v100, v100, v102
    v_max_f32 v102, 0, v102
    v_add_f32 v102, {fhex(1e-5)}, v102
    v_rsq_f32 v104, v102
    v_lshrrev_b32 v106, 3, v0
    v_lshlrev_b32 v106, 3, v106
    v_mul_f32 v105, -v100, v104
    ds_write_b64 v106, v[104:105]
    s_waitcnt lgkmcnt(0)
    s_barrier
    s_cmp_eq_u32 s38, 7
    s_cbranch_scc1 {end}
    v_lshlrev_b32 v106, 5, v2
    ds_read_b128 v[108:111], v106
    ds_read_b128 v[112:115], v106 offset:16
    s_mov_b32 s51, 0x05040100
    s_mov_b32 s52, 0x07060302
    v_perm_b32 v74, v29, v28, s51
    v_perm_b32 v75, v31, v30, s51
    v_perm_b32 v76, v29, v28, s52
    v_perm_b32 v77, v31, v30, s52
    buffer_store_dwordx2 v[74:75], v68, s[32:35], s45 offen
    buffer_store_dwordx2 v[76:77], v68, s[32:35], s46 offen""")
    for t in range(4):
        A(f"v_lshlrev_b32 v{90+t}, 16, v{28+t}\nv_and_b32 v{94+t}, s43, v{28+t}")
    A("s_waitcnt lgkmcnt(0)")
    for t in range(4):
        A(f"v_fma_f32 v{90+t}, v{90+t}, v{108+2*t}, v{109+2*t}\nv_fma_f32 v{94+t}, v{94+t}, v{108+2*t}, v{109+2*t}")
    A("""v_cvt_pk_bf16_f32 v78, v90, v91
    v_cvt_pk_bf16_f32 v79, v92, v93
    v_cvt_pk_bf16_f32 v80, v94, v95
    v_cvt_pk_bf16_f32 v81, v96, v97
    buffer_store_dwordx2 v[78:79], v68, s[32:35], s47 offen
    buffer_store_dwordx2 v[80:81], v68, s[32:35], s48 offen""")
    A(f"{end}:\ns_endpgm")
    return A.text(), 116, 512

def conv_body(A, cset, vA, vB, acc, pool, lookahead=12):
    mf = []
    for i in range(4):
        prs = [(vv, c-vv, c) for c in cset for vv in range(c+1)]
        prs.sort(key=lambda t: (max(t[0], t[1]), t[2], t[0]))
        for vv, e, c in prs: mf.append((("A", i, vv), ("B", i, e), c))
    order = []
    for a, b, c in mf:
        for x in (a, b):
            if x not in order: order.append(x)
    last = {}
    for n, (a, b, c) in enumerate(mf): last[a] = n; last[b] = n
    free = list(pool); reg = {}; done_at = {}; issued = 0; nxt = 0; first = set()
    def issue(x):
        nonlocal issued
        r = free.pop(0); reg[x] = r
        k, i, z = x
        if k == "A":
            A(f"ds_read_b64 v[{r}:{r+1}], v{vA} offset:{64*i+512*z}")
            A(f"ds_read_b64 v[{r+2}:{r+3}], v{vA} offset:{64*i+512*z+8}")
            issued += 2
        else:
            A(f"ds_read_b128 v[{r}:{r+3}], v{vB} offset:{512*z+64*(3-i)}")
            issued += 1
        done_at[x] = issued
    completed = 0
    for n, (a, b, c) in enumerate(mf):
        while a not in reg or b not in reg:
            issue(order[nxt]); nxt += 1
        while nxt < len(order) and free and issued - completed + 2 <= lookahead:
            issue(order[nxt]); nxt += 1
        need = max(done_at[a], done_at[b])
        if need > completed:
            A(f"s_waitcnt lgkmcnt({issued-need})"); completed = need
        cin = v(acc[c], 4) if c in first else "0"
        first.add(c)
        A(f"v_mfma_f32_16x16x32_bf16 {v(acc[c],4)}, {v(reg[a],4)}, {v(reg[b],4)}, {cin}")
        for x in (a, b):
            if last[x] == n: free.append(reg[x])

CA, CAS = 0, 4160
XK, XKS = 33280, 4608
XQ = 42496
RED = 58880
K2_LDS = 75264
def k2():
    A = Asm(); end = "K2_END"
    A(f"""s_cmp_ge_u32 s2, 224
    s_cbranch_scc1 {end}
    s_load_dwordx4 s[4:7], s[0:1], 32
    s_load_dwordx2 s[12:13], s[0:1], 104
    s_and_b32 s36, s2, 7
    s_lshr_b32 s37, s2, 3
    s_mul_i32 s39, s36, 28
    s_add_u32 s39, s39, s37
    v_lshrrev_b32 v4, 6, v0
    v_and_b32 v1, 63, v0
    s_lshl_b32 s53, s39, 2
    v_readfirstlane_b32 s38, v4
    v_lshlrev_b32 v2, 4, v1
    s_lshr_b32 s40, s38, 2
    s_and_b32 s41, s38, 3
    s_lshl_b32 s42, s39, 1
    s_add_u32 s42, s42, s40
    s_lshl_b32 s43, s42, 12
    s_waitcnt lgkmcnt(0)
    s_load_dword s54, s[6:7], s53
    s_add_u32 s4, s4, s43
    s_addc_u32 s5, s5, 0""")
    srd(A, 16, 4, 5, 4096); srd(A, 32, 12, 13, WS_BYTES)
    A(f"""s_mul_i32 s44, s39, 24576
    s_lshl_b32 s45, s38, 10
    s_add_u32 s46, s44, s45
    s_mul_i32 s47, s40, {XKS}
    s_lshl_b32 s48, s41, 10
    s_add_u32 s47, s47, s48
    s_add_u32 m0, s47, {XK+480}
    s_mul_i32 s49, s38, {CAS}
    buffer_load_dwordx4 v2, s[32:35], s46 offen lds
    s_add_u32 m0, s49, {CA+32}
    s_lshl_b32 s50, s41, 1
    s_add_u32 s50, s50, 2
    v_add_u32 v3, s50, v2""")
    for p in range(4): A(f"buffer_load_dwordx4 v3, s[16:19], 0 offen offset:{1024*p} lds")
    A(f"""v_lshl_add_u32 v5, v1, 1, s50
    v_add_u32 v5, {(-32)&0xffffffff}, v5
    buffer_load_ushort v6, v5, s[16:19], 0 offen
    s_lshl_b32 s45, s38, 11
    s_add_u32 m0, s45, {XQ}
    s_add_u32 s46, s44, s45
    s_add_u32 s46, s46, 8192
    buffer_load_dwordx4 v2, s[32:35], s46 offen lds
    buffer_load_dwordx4 v2, s[32:35], s46 offen offset:1024 lds
    v_mov_b32 v8, 0
    v_mov_b32 v9, 0
    s_mul_i32 s47, s40, {XKS}
    s_add_u32 s47, s47, {XK}
    v_lshl_add_u32 v7, v1, 3, s47
    s_mov_b32 exec_hi, 0x0fffffff
    ds_write_b64 v7, v[8:9]
    s_mov_b64 exec, -1
    v_and_b32 v10, 15, v1
    v_lshrrev_b32 v11, 4, v1
    v_and_b32 v12, 3, v10
    v_mul_u32_u24 v12, {CAS}, v12
    v_and_b32 v13, 12, v10
    v_lshlrev_b32 v13, 1, v13
    v_lshl_add_u32 v13, v11, 4, v13
    s_bfe_u32 s51, s38, 0x10001
    s_lshl_b32 s52, s51, 8
    s_mul_i32 s55, s40, {4*CAS}
    s_add_u32 s55, s55, s52
    s_add_u32 s55, s55, {CA}
    v_add3_u32 v14, v12, v13, s55
    v_lshlrev_b32 v15, 5, v10
    v_lshlrev_b32 v16, 4, v11
    v_sub_u32 v15, v15, v16
    s_add_u32 s56, s47, {496-192}
    s_sub_u32 s56, s56, s52
    v_add_u32 v15, s56, v15
    v_lshl_add_u32 v7, v1, 1, s49
    s_waitcnt vmcnt(2)
    s_mov_b64 exec, 0xffff
    ds_write_b16 v7, v6 offset:{CA}
    s_mov_b64 exec, -1
    s_waitcnt lgkmcnt(0)
    s_barrier
    s_bitcmp1_b32 s38, 0
    s_cbranch_scc1 K2_CS1""")
    pool = [40+4*i for i in range(22)]
    for cs, cset in ((0, (0, 3, 4, 7)), (1, (1, 2, 5, 6))):
        if cs == 1: A("K2_CS1:")
        acc = {c: 20+4*n for n, c in enumerate(cset)}
        conv_body(A, cset, 14, 15, acc, pool)
        A(f"""s_cmp_eq_u32 s51, 0
        s_cselect_b32 s57, {cset[0]}, {cset[2]}
        s_cselect_b32 s58, {cset[1]}, {cset[3]}""")
        if cs == 0: A("s_branch K2_EPI")
    A(f"""K2_EPI:
    s_lshl_b32 s59, s38, 11
    s_add_u32 s59, s59, {RED}
    v_add_u32 v17, s59, v2
    s_xor_b32 s59, s38, 2
    s_lshl_b32 s59, s59, 11
    s_add_u32 s59, s59, {RED}
    v_add_u32 v18, s59, v2
    s_nop 2
    s_cmp_eq_u32 s51, 0
    s_cbranch_scc1 K2_RH0
    ds_write_b128 v17, v[20:23]
    ds_write_b128 v17, v[24:27] offset:1024
    s_waitcnt lgkmcnt(0)""")
    for i in range(8): A(f"v_mov_b32 v{20+i}, v{28+i}")
    A(f"""s_branch K2_RH1
    K2_RH0:
    ds_write_b128 v17, v[28:31]
    ds_write_b128 v17, v[32:35] offset:1024
    K2_RH1:
    s_waitcnt vmcnt(0) lgkmcnt(0)
    s_barrier
    ds_read_b128 v[28:31], v18
    ds_read_b128 v[32:35], v18 offset:1024
    v_lshlrev_b32 v40, 5, v10
    v_lshl_add_u32 v40, v11, 3, v40
    s_lshl_b32 s60, s40, 12
    s_add_u32 s60, s60, {XQ}
    s_add_u32 s61, s47, 480
    s_lshl_b32 s62, s57, 9
    s_lshl_b32 s63, s58, 9
    v_xor_b32 v41, 8, v40
    s_add_u32 s64, s61, s62
    v_add_u32 v42, s64, v41
    s_add_u32 s64, s61, s63
    v_add_u32 v43, s64, v41
    s_add_u32 s64, s60, s62
    v_add_u32 v44, s64, v40
    s_add_u32 s64, s60, s63
    v_add_u32 v45, s64, v40
    ds_read_b64 v[46:47], v42
    ds_read_b64 v[48:49], v43
    ds_read_b64 v[50:51], v44
    ds_read_b64 v[52:53], v45
    ds_read_b64 v[54:55], v44 offset:8192
    ds_read_b64 v[56:57], v45 offset:8192
    s_lshl_b32 s65, s54, 16
    s_and_b32 s66, s54, 0xffff0000
    s_cmp_eq_u32 s40, 0
    s_cselect_b32 s65, s65, s66
    s_mov_b32 s67, 0xffff0000
    s_waitcnt lgkmcnt(0)""")
    for t in range(2):
        kv, xx, qq, ac, ot = 46+2*t, 50+2*t, 54+2*t, 20+4*t, 28+4*t
        src = {3: (kv, 0), 2: (kv, 1), 1: (kv+1, 0), 0: (kv+1, 1)}
        for r in range(4):
            def unp(dst, reg, hi): return f"v_and_b32 v{dst}, s67, v{reg}" if hi else f"v_lshlrev_b32 v{dst}, 16, v{reg}"
            A(f"v_add_f32 v{ac+r}, v{ac+r}, v{ot+r}")
            A(unp(60, *src[r])); A(unp(61, xx+(r>>1), r&1)); A(unp(62, qq+(r>>1), r&1))
            A(f"v_fmac_f32 v{ac+r}, s65, v60")
            A(f"v_fma_f32 v{ac+r}, v{ac+r}, v62, v61")
        A(f"v_cvt_pk_bf16_f32 v{64+2*t}, v{ac}, v{ac+1}\nv_cvt_pk_bf16_f32 v{65+2*t}, v{ac+2}, v{ac+3}")
    A(f"""v_lshrrev_b32 v70, 2, v10
    v_and_b32 v71, 1, v11
    v_cmp_eq_u32 vcc, 0, v71
    v_mov_b32 v72, s58
    v_mov_b32 v73, s57
    v_permlane16_swap_b32 v64, v66
    v_permlane16_swap_b32 v65, v67
    v_cndmask_b32 v72, v72, v73, vcc
    v_lshl_add_u32 v70, v72, 2, v70
    v_mul_u32_u24 v70, 57344, v70
    v_and_b32 v73, 3, v10
    v_lshlrev_b32 v73, 5, v73
    v_lshrrev_b32 v74, 1, v11
    v_lshl_add_u32 v73, v74, 4, v73
    s_lshl_b32 s68, s42, 7
    s_add_u32 s68, s68, {WS_H}
    v_add_u32 v70, v70, v73
    buffer_store_dwordx4 v[64:67], v70, s[32:35], s68 offen
    {end}:
    s_endpgm""")
    return A.text(), 128, 512

def rt_fs(A):
    A("""s_and_b32 s36, s2, 7
    s_lshr_b32 s37, s2, 3
    s_mul_i32 s39, s37, 37
    s_lshr_b32 s39, s39, 8
    s_mul_i32 s40, s39, 7
    s_sub_u32 s40, s37, s40
    s_lshl_b32 s36, s36, 2
    s_add_u32 s39, s39, s36""")

def tr_pattern(A, dst0, dst1, lane, t0, t1, t2):
    A(f"""v_and_b32 v{t0}, 3, v{lane}
    v_bfe_u32 v{t1}, v{lane}, 2, 2
    v_lshrrev_b32 v{t2}, 5, v{lane}
    v_lshl_add_u32 v{t2}, v{t2}, 2, v{t1}
    v_lshlrev_b32 v{dst0}, 7, v{t2}
    v_lshrrev_b32 v{t1}, 1, v{t1}
    v_lshlrev_b32 v{t1}, 6, v{t1}
    v_add_u32 v{dst0}, v{dst0}, v{t1}
    v_bfe_u32 v{t1}, v{lane}, 4, 1
    v_lshl_add_u32 v{dst0}, v{t1}, 5, v{dst0}
    v_lshl_add_u32 v{dst0}, v{t0}, 3, v{dst0}
    v_xor_b32 v{dst1}, 64, v{dst0}""")

def dma_swz(A, dst, lane, t0, t1, rowstride):
    A(f"""v_lshrrev_b32 v{t0}, 3, v{lane}
    v_mul_u32_u24 v{t0}, {rowstride}, v{t0}
    v_and_b32 v{t1}, 7, v{lane}
    v_lshlrev_b32 v{t1}, 4, v{t1}
    v_bfe_u32 v{dst}, v{lane}, 4, 1
    v_lshlrev_b32 v{dst}, 6, v{dst}
    v_xor_b32 v{t1}, v{t1}, v{dst}
    v_add_u32 v{dst}, v{t0}, v{t1}""")

GC1 = -2.0*0.7978845608028654*1.4426950408889634
GC2 = GC1*0.044715
HT, WST3, ST3, CS3 = 0, 57344, 139264, 141312
K3_LDS = 143360
def k3():
    A = Asm(); end = "K3_END"; DEP = 10
    A(f"""s_cmp_ge_u32 s2, 224
    s_cbranch_scc1 {end}
    s_load_dwordx4 s[4:7], s[0:1], 56
    s_load_dwordx2 s[12:13], s[0:1], 104""")
    rt_fs(A)
    A(f"""v_lshrrev_b32 v4, 6, v0
    v_and_b32 v1, 63, v0
    s_nop 0
    v_readfirstlane_b32 s38, v4""")
    dma_swz(A, 2, 1, 5, 6, 128)
    A(f"""v_lshrrev_b32 v5, 2, v1
    v_mul_u32_u24 v5, 3584, v5
    v_and_b32 v6, 3, v1
    v_lshl_add_u32 v3, v6, 4, v5
    s_lshl_b32 s41, s40, 3
    s_add_u32 s41, s41, s38
    s_lshl_b32 s42, s41, 6
    v_add_u32 v3, s42, v3
    v_and_b32 v7, 31, v1
    v_lshl_add_u32 v8, v7, 1, s42
    s_waitcnt lgkmcnt(0)""")
    srd(A, 16, 4, 5, D*F*2); srd(A, 20, 6, 7, F*2); srd(A, 32, 12, 13, WS_BYTES)
    A(f"""buffer_load_ushort v9, v8, s[20:23], 0 offen
    s_mul_i32 s43, s39, 57344
    s_mul_i32 s44, s38, 7168
    s_add_u32 s43, s43, s44
    s_add_u32 s43, s43, {WS_H}
    s_add_u32 m0, s44, {HT}
    s_add_u32 s45, s43, 4096""")
    for i in range(4): A(f"buffer_load_dwordx4 v2, s[32:35], s43 offen offset:{1024*i} lds")
    A(f"s_add_u32 m0, s44, {HT+4096}\ns_nop 0")
    for i in range(3): A(f"buffer_load_dwordx4 v2, s[32:35], s45 offen offset:{1024*i} lds")
    A(f"""s_mul_i32 s46, s38, {DEP*1024}
    s_add_u32 s46, s46, {WST3}""")
    def dma(it):
        if it % 7 == 0:
            A(f"""s_add_u32 s47, s38, {it//7}
            s_and_b32 s47, s47, 3
            s_mul_i32 s47, s47, {7*57344}""")
        else:
            A(f"s_add_u32 s47, s47, 57344")
        A(f"""s_add_u32 m0, s46, {(it % DEP)*1024}
        s_nop 0
        buffer_load_dwordx4 v3, s[16:19], s47 offen lds""")
    for it in range(DEP): dma(it)
    tr_pattern(A, 10, 11, 1, 5, 6, 12)
    A(f"""s_and_b32 s48, s38, 4
    s_lshl_b32 s48, s48, 4
    v_xor_b32 v10, s48, v10
    v_xor_b32 v11, s48, v11
    v_and_b32 v5, 3, v1
    v_bfe_u32 v6, v1, 2, 2
    v_lshrrev_b32 v12, 5, v1
    v_lshl_add_u32 v12, v12, 2, v6
    v_lshlrev_b32 v12, 6, v12
    v_bfe_u32 v6, v1, 4, 1
    v_lshl_add_u32 v12, v6, 5, v12
    v_lshl_add_u32 v12, v5, 3, v12
    v_add_u32 v12, s46, v12
    s_mov_b32 s50, 0x3f803f80
    v_mov_b32 v16, 0
    v_mov_b32 v17, 0
    v_mov_b32 v18, 0
    v_mov_b32 v19, 0
    s_waitcnt vmcnt({DEP})
    s_barrier""")
    ACC0, ACC1 = 32, 48
    buf = [(64, 68, 72), (76, 80, 84)]
    def reads(it):
        a, b0, b1 = buf[it & 1]
        if it % 7 == 0:
            A(f"""s_add_u32 s49, s38, {it//7}
            s_and_b32 s49, s49, 3
            s_mul_i32 s49, s49, {7*2048}
            v_add_u32 v13, s49, v10
            v_add_u32 v14, s49, v11""")
        so = (it % DEP)*1024; bo = HT + (it % 7)*2048
        A(f"""ds_read_b64_tr_b16 v[{a}:{a+1}], v12 offset:{so}
        ds_read_b64_tr_b16 v[{a+2}:{a+3}], v12 offset:{so+512}
        ds_read_b64_tr_b16 v[{b0}:{b0+1}], v13 offset:{bo}
        ds_read_b64_tr_b16 v[{b0+2}:{b0+3}], v13 offset:{bo+1024}
        ds_read_b64_tr_b16 v[{b1}:{b1+1}], v14 offset:{bo}
        ds_read_b64_tr_b16 v[{b1+2}:{b1+3}], v14 offset:{bo+1024}""")
    A(f"s_waitcnt vmcnt({DEP-1})")
    reads(0)
    for it in range(28):
        a, b0, b1 = buf[it & 1]
        if it + 1 < 28:
            A(f"s_waitcnt vmcnt({min(27, it+DEP-1)-(it+1)})")
            reads(it+1)
            A("s_waitcnt lgkmcnt(6)")
        else:
            A("s_waitcnt lgkmcnt(0)")
        c0 = v(ACC0, 16) if it else "0"; c1 = v(ACC1, 16) if it else "0"
        A(f"v_mfma_f32_32x32x16_bf16 {v(ACC0,16)}, {v(a,4)}, {v(b0,4)}, {c0}")
        if it + DEP < 28: dma(it + DEP)
        for i in range(4): A(f"v_dot2_f32_bf16 v16, v{a+i}, s50, v16")
        A(f"v_mfma_f32_32x32x16_bf16 {v(ACC1,16)}, {v(a,4)}, {v(b1,4)}, {c1}")
        if it < 7:
            for i in range(4):
                A(f"v_dot2_f32_bf16 v18, v{b0+i}, s50, v18\nv_dot2_f32_bf16 v19, v{b0+i}, v{b0+i}, v19")
    A(f"""s_nop 2
    v_mov_b32 v20, v16
    v_mov_b32 v21, v18
    v_mov_b32 v22, v19
    v_lshlrev_b32 v9, 16, v9
    s_nop 0
    v_permlane32_swap_b32 v16, v20
    v_permlane32_swap_b32 v18, v21
    v_permlane32_swap_b32 v19, v22
    s_lshl_b32 s51, s38, 8
    s_add_u32 s52, s51, {CS3}
    s_add_u32 s51, s51, {ST3}
    v_add_f32 v16, v16, v20
    v_add_f32 v18, v18, v21
    v_add_f32 v19, v19, v22
    v_lshl_add_u32 v23, v7, 2, s52
    v_lshl_add_u32 v24, v7, 3, s51
    ds_write_b32 v23, v16
    ds_write_b32 v23, v9 offset:128
    ds_write_b64 v24, v[18:19]
    s_waitcnt lgkmcnt(0)
    s_barrier
    s_and_b32 s53, s38, 4
    s_lshl_b32 s53, s53, 8
    s_add_u32 s53, s53, {ST3}
    v_lshl_add_u32 v24, v7, 3, s53
    v_xor_b32 v25, 1024, v24""")
    assert ST3 % 2048 == 0
    for t, ad in ((0, 24), (1, 25)):
        for qd in range(4): A(f"ds_read_b64 v[{64+8*t+2*qd}:{65+8*t+2*qd}], v{ad} offset:{256*qd}")
    A(f"""v_lshrrev_b32 v26, 5, v1
    v_lshl_add_u32 v26, v26, 4, s52""")
    for a in range(4):
        A(f"ds_read_b128 v[{96+4*a}:{99+4*a}], v26 offset:{32*a}")
    A("s_waitcnt lgkmcnt(4)")
    for a in range(4):
        A(f"ds_read_b128 v[{112+4*a}:{115+4*a}], v26 offset:{128+32*a}")
    for t in range(2):
        b = 64+8*t
        A(f"""v_add_f32 v{b}, v{b}, v{b+2}
        v_add_f32 v{b+1}, v{b+1}, v{b+3}
        v_add_f32 v{b+4}, v{b+4}, v{b+6}
        v_add_f32 v{b+5}, v{b+5}, v{b+7}
        v_add_f32 v{b}, v{b}, v{b+4}
        v_add_f32 v{b+1}, v{b+1}, v{b+5}
        v_mul_f32 v{b}, {fhex(1/448)}, v{b}
        v_mul_f32 v{b+1}, {fhex(1/448)}, v{b+1}
        v_fma_f32 v{b+1}, -v{b}, v{b}, v{b+1}
        v_max_f32 v{b+1}, 0, v{b+1}
        v_add_f32 v{b+2}, {fhex(1e-5)}, v{b+1}
        v_rsq_f32 v{b+2}, v{b+2}
        s_nop 0
        v_mul_f32 v{b+3}, v{b+2}, v{b+2}
        v_mul_f32 v{b+3}, v{b+3}, v{b+1}
        v_add_f32 v{b+3}, {fhex(1e-5)}, v{b+3}
        v_rsq_f32 v{b+3}, v{b+3}
        s_nop 0
        v_mul_f32 v{b+2}, v{b+2}, v{b+3}
        v_mul_f32 v{b+3}, -v{b}, v{b+2}""")
    A(f"""s_mov_b32 s54, {fhex(GC2)}
    v_mov_b32 v27, {fhex(GC1)}
    s_mul_i32 s55, s39, 229376
    s_lshl_b32 s56, s41, 12
    s_add_u32 s55, s55, s56
    s_add_u32 s55, s55, {WS_HID}
    s_and_b32 s56, s38, 4
    s_lshl_b32 s56, s56, 8
    v_lshl_add_u32 v28, v1, 4, s56
    v_xor_b32 v29, 1024, v28
    s_waitcnt lgkmcnt(0)""")
    for t in range(2):
        acc = (ACC0, ACC1)[t]; r, n = 64+8*t+2, 64+8*t+3
        for g in range(4):
            T = [80, 84, 88]
            for i in range(4):
                e = 4*g+i
                A(f"v_fma_f32 v{80+i}, v{n}, v{96+e}, v{112+e}")
            for i in range(4): A(f"v_fma_f32 v{acc+4*g+i}, v{acc+4*g+i}, v{r}, v{80+i}")
            for i in range(4): A(f"v_mul_f32 v{80+i}, v{acc+4*g+i}, v{acc+4*g+i}")
            for i in range(4): A(f"v_fma_f32 v{80+i}, v{80+i}, s54, v27")
            for i in range(4): A(f"v_mul_f32 v{80+i}, v{80+i}, v{acc+4*g+i}")
            for i in range(4): A(f"v_exp_f32 v{80+i}, v{80+i}")
            for i in range(4): A(f"v_add_f32 v{80+i}, 1.0, v{80+i}")
            for i in range(4): A(f"v_rcp_f32 v{80+i}, v{80+i}")
            for i in range(4): A(f"v_mul_f32 v{acc+4*g+i}, v{acc+4*g+i}, v{80+i}")
            o = 128+8*t+2*g
            A(f"v_cvt_pk_bf16_f32 v{o}, v{acc+4*g}, v{acc+4*g+1}\nv_cvt_pk_bf16_f32 v{o+1}, v{acc+4*g+2}, v{acc+4*g+3}")
            if g & 1:
                A(f"buffer_store_dwordx4 v[{o-2}:{o+1}], v{28+t}, s[32:35], s55 offen offset:{2048*(g>>1)}")
    A(f"{end}:\ns_endpgm")
    return A.text(), 144, 512

WST4, P4, HR4 = 0, 65536, 139264
K4_LDS = 147456
def k4():
    A = Asm(); end = "K4_END"; DEP = 4
    A(f"""s_cmp_ge_u32 s2, 224
    s_cbranch_scc1 {end}
    s_load_dwordx4 s[4:7], s[0:1], 72
    s_load_dwordx2 s[8:9], s[0:1], 88
    s_load_dwordx2 s[12:13], s[0:1], 104""")
    rt_fs(A)
    A(f"""v_lshrrev_b32 v4, 6, v0
    v_and_b32 v1, 63, v0
    s_lshl_b32 s41, s40, 7
    v_readfirstlane_b32 s38, v4""")
    dma_swz(A, 2, 1, 5, 6, 128)
    dma_swz(A, 3, 1, 5, 6, 896)
    A(f"""v_add_u32 v3, s41, v3
    v_lshlrev_b32 v4, 4, v1
    v_and_b32 v7, 7, v1
    v_lshl_add_u32 v8, v7, 4, s41
    s_waitcnt lgkmcnt(0)""")
    srd(A, 16, 4, 5, D*F*2); srd(A, 20, 6, 7, D*2); srd(A, 24, 8, 9, NBX); srd(A, 32, 12, 13, WS_BYTES)
    A(f"""buffer_load_dwordx4 v[16:19], v8, s[20:23], 0 offen
    s_mul_i32 s43, s39, 57344
    s_lshl_b32 s44, s40, 13
    s_add_u32 s43, s43, s44
    s_lshl_b32 s44, s38, 10
    s_add_u32 s43, s43, s44
    s_add_u32 s43, s43, {WS_H}
    s_add_u32 m0, s44, {HR4}
    s_mul_i32 s45, s39, 229376
    buffer_load_dwordx4 v2, s[32:35], s43 offen lds
    s_mul_i32 s46, s38, {14*2048}
    s_add_u32 s45, s45, s46
    s_add_u32 s45, s45, {WS_HID}
    s_mul_i32 s47, s38, {224*896}
    s_lshl_b32 s46, s38, 13
    s_add_u32 s46, s46, {WST4}""")
    NB = DEP+1
    BB = [160+8*i for i in range(NB)]
    def ld(it):
        b = BB[it % NB]
        A(f"""s_add_u32 m0, s46, {(it % DEP)*2048}
        s_add_u32 s48, s47, {8*896}
        buffer_load_dwordx4 v3, s[16:19], s47 offen lds
        s_add_u32 m0, s46, {(it % DEP)*2048+1024}
        s_add_u32 s47, s47, {16*896}
        buffer_load_dwordx4 v3, s[16:19], s48 offen lds
        buffer_load_dwordx4 v[{b}:{b+3}], v4, s[32:35], s45 offen
        buffer_load_dwordx4 v[{b+4}:{b+7}], v4, s[32:35], s45 offen offset:1024
        s_add_u32 s45, s45, 2048""")
    for it in range(DEP): ld(it)
    tr_pattern(A, 10, 11, 1, 5, 6, 12)
    A(f"""v_add_u32 v12, s46, v10
    v_add_u32 v13, s46, v11""")
    ACC = {(0, 0): 32, (0, 1): 48, (1, 0): 64, (1, 1): 80}
    AB = [(96, 100), (104, 108)]
    def reads(it):
        a0, a1 = AB[it & 1]; so = (it % DEP)*2048
        A(f"""ds_read_b64_tr_b16 v[{a0}:{a0+1}], v12 offset:{so}
        ds_read_b64_tr_b16 v[{a0+2}:{a0+3}], v12 offset:{so+1024}
        ds_read_b64_tr_b16 v[{a1}:{a1+1}], v13 offset:{so}
        ds_read_b64_tr_b16 v[{a1+2}:{a1+3}], v13 offset:{so+1024}""")
    A(f"s_waitcnt vmcnt({4*(DEP-1)})")
    reads(0)
    for it in range(14):
        a = AB[it & 1]; b = BB[it % NB]
        if it + 1 < 14:
            A(f"s_waitcnt vmcnt({4*(min(13, it+DEP-1)-(it+1))})")
            reads(it+1)
            A("s_waitcnt lgkmcnt(4)")
        else:
            A("s_waitcnt lgkmcnt(0)")
        for dt in range(2):
            for rt in range(2):
                c = v(ACC[dt, rt], 16) if it else "0"
                A(f"v_mfma_f32_32x32x16_bf16 {v(ACC[dt,rt],16)}, {v(a[dt],4)}, {v(b+4*rt,4)}, {c}")
                if dt == 0 and rt == 0 and it + DEP < 14: ld(it + DEP)
    A(f"""s_barrier
    s_lshr_b32 s50, s38, 2
    s_bfe_u32 s51, s38, 0x10001
    s_and_b32 s52, s38, 1
    s_lshl_b32 s52, s52, 1
    s_lshl_b32 s53, s50, 2
    s_add_u32 s53, s53, s52
    s_lshl_b32 s54, s53, 10
    s_add_u32 s54, s54, {HR4}
    s_lshl_b32 s55, s51, 6
    v_xor_b32 v14, s55, v10
    v_add_u32 v14, s54, v14
    ds_read_b64_tr_b16 v[20:21], v14
    ds_read_b64_tr_b16 v[22:23], v14 offset:1024
    v_and_b32 v5, 31, v1
    v_lshlrev_b32 v5, 7, v5
    v_lshrrev_b32 v6, 5, v1
    v_lshl_add_u32 v5, v6, 3, v5
    s_lshl_b32 s56, s38, 13
    s_add_u32 s56, s56, {P4}
    v_add_u32 v15, s56, v5""")
    for pc in range(8):
        A(f"v_xor_b32 v6, {pc}, v7\nv_lshl_add_u32 v{112+pc}, v6, 4, v15")
    A(f"""s_lshl_b32 s57, s51, 12
    s_add_u32 s57, s57, {P4+8*8192}
    v_add_u32 v5, s57, v5
    v_xor_b32 v6, s53, v7
    v_lshl_add_u32 v24, v6, 4, v5
    v_xor_b32 v25, 16, v24
    s_waitcnt lgkmcnt(0)
    ds_write_b64 v24, v[20:21]
    ds_write_b64 v25, v[22:23]""")
    n = 0
    for dt in range(2):
        for rt in range(2):
            for a in range(4):
                r = ACC[dt, rt]+4*a; o = 120+2*(n % 8); n += 1
                A(f"""v_cvt_pk_bf16_f32 v{o}, v{r}, v{r+1}
                v_cvt_pk_bf16_f32 v{o+1}, v{r+2}, v{r+3}
                ds_write_b64 v{112+4*dt+a}, v[{o}:{o+1}] offset:{4096*rt}""")
                if n % 8 == 0: A("s_waitcnt lgkmcnt(0)")
    A(f"""s_barrier
    v_lshrrev_b32 v5, 3, v0
    v_and_b32 v6, 7, v5
    v_xor_b32 v6, v6, v7
    v_lshlrev_b32 v26, 7, v5
    v_lshl_add_u32 v26, v6, 4, v26
    v_add_u32 v26, {P4}, v26
    v_add_u32 v27, 32768, v26""")
    for i in range(9):
        A(f"ds_read_b128 v[{32+4*i}:{35+4*i}], v{26 if i < 4 else 27} offset:{8192*(i if i < 4 else i-4)}")
    A(f"""s_lshl_b32 s58, s39, 6
    v_add_u32 v5, s58, v5
    v_mul_u32_u24 v5, 896, v5
    v_add_u32 v5, v5, v8
    s_mov_b32 s59, 0xffff0000
    s_mov_b32 s60, 0x3f80
    s_mov_b32 s61, 0x3f800000""")
    for i in range(4):
        A(f"v_lshlrev_b32 v{72+2*i}, 16, v{16+i}\nv_and_b32 v{73+2*i}, s59, v{16+i}")
    for i in range(9):
        A(f"s_waitcnt lgkmcnt({8-i})")
        for d in range(4):
            A(f"v_dot2_f32_bf16 v{72+2*d}, v{32+4*i+d}, s60, v{72+2*d}\nv_dot2_f32_bf16 v{73+2*d}, v{32+4*i+d}, s61, v{73+2*d}")
    A("s_nop 2")
    for d in range(4): A(f"v_cvt_pk_bf16_f32 v{80+d}, v{72+2*d}, v{73+2*d}")
    A(f"""buffer_store_dwordx4 v[80:83], v5, s[24:27], 0 offen
    {end}:
    s_endpgm""")
    return A.text(), 200, 512

def build(extra=0):
    ks = [("p1_kernel", k1(), 256, 1024), ("conv_kernel", k2(), 224, K2_LDS), ("g1_kernel", k3(), 224, K3_LDS), ("g2_kernel", k4(), 224, K4_LDS)]
    hdr = open("sequential_preLN__ssm_conv_h3__mixer_channel_mlp__prompt.s.ref").read().split("; Override launch")[0]
    out = hdr
    for name, (t, vg, blk), grid, lds in ks:
        out += f"; @launch kernel={name} grid=({grid},1,1) block=({blk},1,1) lds={lds}\n"
    for i in range(extra):
        out += f"; @launch kernel=nop_kernel grid=(256,1,1) block=(512,1,1) lds=0\n"
    out += '.amdgcn_target "amdgcn-amd-amdhsa--gfx950"\n'
    for name, (t, vg, blk), grid, lds in ks:
        out += kernel_header(name) + t
    if extra: out += kernel_header("nop_kernel") + "    s_endpgm\n"
    for name, (t, vg, blk), grid, lds in ks:
        out += kernel_desc(name, vg)
    if extra: out += kernel_desc("nop_kernel", 8)
    return out

if __name__ == "__main__":
    path = sys.argv[1] if len(sys.argv) > 1 else "sequential_preLN__ssm_conv_h3__mixer_channel_mlp__prompt.s"
    extra = int(sys.argv[2]) if len(sys.argv) > 2 else 0
    open(path, "w").write(build(extra))
```

```python
import sys
from asmlib import *

S, D, F = 2048, 448, 1792
WS_T, WS_H, WS_HID = 0, 0x600000, 0x800000
WS_BYTES = 0x2000000
STAMP = False
WS_STAMP = 0x1000000
NBX = S*D*2

def srd(A, r, lo, hi, nbytes):
    A(f"""s_mov_b32 s{r}, s{lo}
    s_and_b32 s{r+1}, s{hi}, 0xffff
    s_mov_b32 s{r+2}, {nbytes}
    s_mov_b32 s{r+3}, 0x20000""")

def k1():
    A = Asm(); end = "K1_END"
    A(f"""s_cmp_ge_u32 s2, 256
    s_cbranch_scc1 {end}
    s_load_dwordx4 s[4:7], s[0:1], 0
    s_load_dwordx4 s[8:11], s[0:1], 16
    s_load_dwordx2 s[12:13], s[0:1], 104
    s_and_b32 s36, s2, 7
    s_lshr_b32 s37, s2, 3
    v_lshrrev_b32 v1, 4, v0
    v_and_b32 v2, 15, v0
    v_lshrrev_b32 v4, 6, v0
    s_lshl_b32 s39, s37, 6
    v_readfirstlane_b32 s38, v4
    v_lshl_add_u32 v3, v2, 2, s39
    v_mul_u32_u24 v3, 896, v3
    s_mul_i32 s40, s36, 112
    v_lshl_add_u32 v5, v1, 2, s40
    v_add_u32 v3, v3, v5
    v_add_u32 v6, {(-2688)&0xffffffff}, v3
    v_add_u32 v7, {(-1792)&0xffffffff}, v3
    v_add_u32 v8, {(-896)&0xffffffff}, v3
    s_mul_i32 s41, s36, 28
    v_add_u32 v9, s41, v1
    v_lshlrev_b32 v21, 4, v9
    v_and_b32 v22, 63, v0
    v_lshrrev_b32 v23, 3, v22
    s_lshl_b32 s42, s38, 3
    s_add_u32 s42, s42, s39
    v_add_u32 v23, s42, v23
    v_mul_u32_u24 v23, 896, v23
    v_and_b32 v22, 7, v22
    v_lshl_add_u32 v23, v22, 4, v23
    s_waitcnt lgkmcnt(0)""")
    srd(A, 16, 4, 5, NBX); srd(A, 20, 6, 7, NBX); srd(A, 24, 8, 9, NBX); srd(A, 28, 10, 11, D*4*2); srd(A, 32, 12, 13, WS_BYTES)
    A(f"""s_cmp_eq_u32 s38, 7
    s_cbranch_scc1 K1_ST
    buffer_load_dword v10, v6, s[20:23], 0 offen
    buffer_load_dword v11, v7, s[20:23], 0 offen
    buffer_load_dword v12, v8, s[20:23], 0 offen""")
    for t in range(4): A(f"buffer_load_dword v{13+t}, v3, s[20:23], 0 offen offset:{896*t}")
    for t in range(4): A(f"buffer_load_dword v{17+t}, v3, s[24:27], 0 offen offset:{896*t}")
    A("buffer_load_dwordx4 v[24:27], v21, s[28:31], 0 offen")
    for t in range(4): A(f"buffer_load_dword v{28+t}, v3, s[16:19], 0 offen offset:{896*t}")
    A("K1_ST:")
    for i in range(7): A(f"buffer_load_dwordx4 v[{32+4*i}:{35+4*i}], v23, s[16:19], 0 offen offset:{128*i}")
    A(f"""s_mov_b32 s43, 0xffff0000
    s_mov_b32 s44, 4096
    s_mov_b32 s45, 8192
    s_mov_b32 s46, 12288
    s_mov_b32 s47, 16384
    s_mov_b32 s48, 20480
    v_mul_u32_u24 v9, 24576, v9
    s_lshl_b32 s49, s37, 7
    v_lshl_add_u32 v68, v2, 3, s49
    v_add_u32 v68, v68, v9
    v_xor_b32 v69, 8, v68
    s_cmp_eq_u32 s38, 7
    s_cbranch_scc1 K1_ST2
    ;STAMP 1
    s_waitcnt vmcnt(11)
    ;STAMP 2""")
    for i in range(4):
        A(f"v_lshlrev_b32 v{60+2*i}, 16, v{24+i}\nv_and_b32 v{61+2*i}, s43, v{24+i}")
    for i in range(7):
        A(f"v_lshlrev_b32 v{70+i}, 16, v{10+i}\nv_and_b32 v{80+i}, s43, v{10+i}")
    for t in range(4):
        A(f"""v_mul_f32 v{90+t}, v{73+t}, v60
        v_mul_f32 v{94+t}, v{83+t}, v64""")
        for j in range(1, 4):
            A(f"""v_fmac_f32 v{90+t}, v{73+t-j}, v{60+j}
            v_fmac_f32 v{94+t}, v{83+t-j}, v{64+j}""")
        A(f"""v_lshlrev_b32 v98, 16, v{17+t}
        v_and_b32 v99, s43, v{17+t}
        v_mul_f32 v{90+t}, v{90+t}, v98
        v_mul_f32 v{94+t}, v{94+t}, v99""")
    A("""v_cvt_pk_bf16_f32 v70, v93, v92
    v_cvt_pk_bf16_f32 v71, v91, v90
    v_cvt_pk_bf16_f32 v72, v97, v96
    v_cvt_pk_bf16_f32 v73, v95, v94
    buffer_store_dwordx2 v[70:71], v69, s[32:35], 0 offen
    buffer_store_dwordx2 v[72:73], v69, s[32:35], s44 offen
    s_waitcnt vmcnt(2)
    s_branch K1_ST3
    K1_ST2:
    s_waitcnt vmcnt(0)
    K1_ST3:
    ;STAMP 3
    s_mov_b32 s50, 0x3f803f80
    v_mov_b32 v100, 0
    v_mov_b32 v101, 0
    v_mov_b32 v102, 0
    v_mov_b32 v103, 0""")
    for i in range(28):
        A(f"v_dot2_f32_bf16 v{100+(i&1)}, v{32+i}, s50, v{100+(i&1)}")
        A(f"v_dot2_f32_bf16 v{102+(i&1)}, v{32+i}, v{32+i}, v{102+(i&1)}")
    A("""s_nop 2
    v_add_f32 v100, v100, v101
    v_add_f32 v102, v102, v103
    s_nop 1""")
    for dpp in ("quad_perm:[1,0,3,2]", "quad_perm:[2,3,0,1]", "row_half_mirror"):
        A(f"""v_add_f32_dpp v100, v100, v100 {dpp} row_mask:0xf bank_mask:0xf
        v_add_f32_dpp v102, v102, v102 {dpp} row_mask:0xf bank_mask:0xf
        s_nop 1""")
    A(f"""v_mul_f32 v100, {fhex(1/448)}, v100
    v_mul_f32 v102, {fhex(1/448)}, v102
    v_fma_f32 v102, -v100, v100, v102
    v_max_f32 v102, 0, v102
    v_add_f32 v102, {fhex(1e-5)}, v102
    v_rsq_f32 v104, v102
    v_lshrrev_b32 v106, 3, v0
    v_lshlrev_b32 v106, 3, v106
    v_mul_f32 v105, -v100, v104
    ds_write_b64 v106, v[104:105]
    ;STAMP 4
    s_waitcnt lgkmcnt(0)
    s_barrier
    ;STAMP 5
    s_cmp_eq_u32 s38, 7
    s_cbranch_scc1 {end}
    v_lshlrev_b32 v106, 5, v2
    ds_read_b128 v[108:111], v106
    ds_read_b128 v[112:115], v106 offset:16
    s_mov_b32 s51, 0x05040100
    s_mov_b32 s52, 0x07060302
    v_perm_b32 v74, v29, v28, s51
    v_perm_b32 v75, v31, v30, s51
    v_perm_b32 v76, v29, v28, s52
    v_perm_b32 v77, v31, v30, s52
    buffer_store_dwordx2 v[74:75], v68, s[32:35], s45 offen
    buffer_store_dwordx2 v[76:77], v68, s[32:35], s46 offen""")
    for t in range(4):
        A(f"v_lshlrev_b32 v{90+t}, 16, v{28+t}\nv_and_b32 v{94+t}, s43, v{28+t}")
    A("s_waitcnt lgkmcnt(0)")
    for t in range(4):
        A(f"v_fma_f32 v{90+t}, v{90+t}, v{108+2*t}, v{109+2*t}\nv_fma_f32 v{94+t}, v{94+t}, v{108+2*t}, v{109+2*t}")
    A("""v_cvt_pk_bf16_f32 v78, v90, v91
    v_cvt_pk_bf16_f32 v79, v92, v93
    v_cvt_pk_bf16_f32 v80, v94, v95
    v_cvt_pk_bf16_f32 v81, v96, v97
    buffer_store_dwordx2 v[78:79], v68, s[32:35], s47 offen
    buffer_store_dwordx2 v[80:81], v68, s[32:35], s48 offen""")
    A(f"{end}:\ns_endpgm")
    return A.text(), 116, 512

def conv_body(A, cset, vA, vB, acc, pool, lookahead=12):
    mf = []
    for i in range(4):
        prs = [(vv, c-vv, c) for c in cset for vv in range(c+1)]
        prs.sort(key=lambda t: (max(t[0], t[1]), t[2], t[0]))
        for vv, e, c in prs: mf.append((("A", i, vv), ("B", i, e), c))
    order = []
    for a, b, c in mf:
        for x in (a, b):
            if x not in order: order.append(x)
    last = {}
    for n, (a, b, c) in enumerate(mf): last[a] = n; last[b] = n
    free = list(pool); reg = {}; done_at = {}; issued = 0; nxt = 0; first = set()
    def issue(x):
        nonlocal issued
        r = free.pop(0); reg[x] = r
        k, i, z = x
        if k == "A":
            A(f"ds_read_b64 v[{r}:{r+1}], v{vA} offset:{64*i+512*z}")
            A(f"ds_read_b64 v[{r+2}:{r+3}], v{vA} offset:{64*i+512*z+8}")
            issued += 2
        else:
            A(f"ds_read_b128 v[{r}:{r+3}], v{vB} offset:{512*z+64*(3-i)}")
            issued += 1
        done_at[x] = issued
    completed = 0
    for n, (a, b, c) in enumerate(mf):
        while a not in reg or b not in reg:
            issue(order[nxt]); nxt += 1
        while nxt < len(order) and free and issued - completed + 2 <= lookahead:
            issue(order[nxt]); nxt += 1
        need = max(done_at[a], done_at[b])
        if need > completed:
            A(f"s_waitcnt lgkmcnt({issued-need})"); completed = need
        cin = v(acc[c], 4) if c in first else "0"
        first.add(c)
        A(f"v_mfma_f32_16x16x32_bf16 {v(acc[c],4)}, {v(reg[a],4)}, {v(reg[b],4)}, {cin}")
        for x in (a, b):
            if last[x] == n: free.append(reg[x])

CA, CAS = 0, 4160
XK, XKS = 33280, 4608
XQ = 42496
RED = 58880
K2_LDS = 75264
def k2():
    A = Asm(); end = "K2_END"
    A(f"""s_cmp_ge_u32 s2, 224
    s_cbranch_scc1 {end}
    s_load_dwordx4 s[4:7], s[0:1], 32
    s_load_dwordx2 s[12:13], s[0:1], 104
    s_and_b32 s36, s2, 7
    s_lshr_b32 s37, s2, 3
    s_mul_i32 s39, s36, 28
    s_add_u32 s39, s39, s37
    v_lshrrev_b32 v4, 6, v0
    v_and_b32 v1, 63, v0
    s_lshl_b32 s53, s39, 2
    v_readfirstlane_b32 s38, v4
    v_lshlrev_b32 v2, 4, v1
    s_lshr_b32 s40, s38, 2
    s_and_b32 s41, s38, 3
    s_lshl_b32 s42, s39, 1
    s_add_u32 s42, s42, s40
    s_lshl_b32 s43, s42, 12
    s_waitcnt lgkmcnt(0)
    s_load_dword s54, s[6:7], s53
    s_add_u32 s4, s4, s43
    s_addc_u32 s5, s5, 0""")
    srd(A, 16, 4, 5, 4096); srd(A, 32, 12, 13, WS_BYTES)
    A(f"""s_mul_i32 s44, s39, 24576
    s_lshl_b32 s45, s38, 10
    s_add_u32 s46, s44, s45
    s_mul_i32 s47, s40, {XKS}
    s_lshl_b32 s48, s41, 10
    s_add_u32 s47, s47, s48
    s_add_u32 m0, s47, {XK+480}
    s_mul_i32 s49, s38, {CAS}
    buffer_load_dwordx4 v2, s[32:35], s46 offen lds
    s_add_u32 m0, s49, {CA+32}
    s_lshl_b32 s50, s41, 1
    s_add_u32 s50, s50, 2
    v_add_u32 v3, s50, v2""")
    for p in range(4): A(f"buffer_load_dwordx4 v3, s[16:19], 0 offen offset:{1024*p} lds")
    A(f"""v_lshl_add_u32 v5, v1, 1, s50
    v_add_u32 v5, {(-32)&0xffffffff}, v5
    buffer_load_ushort v6, v5, s[16:19], 0 offen
    s_lshl_b32 s45, s38, 11
    s_add_u32 m0, s45, {XQ}
    s_add_u32 s46, s44, s45
    s_add_u32 s46, s46, 8192
    buffer_load_dwordx4 v2, s[32:35], s46 offen lds
    buffer_load_dwordx4 v2, s[32:35], s46 offen offset:1024 lds
    v_mov_b32 v8, 0
    v_mov_b32 v9, 0
    s_mul_i32 s47, s40, {XKS}
    s_add_u32 s47, s47, {XK}
    v_lshl_add_u32 v7, v1, 3, s47
    s_mov_b32 exec_hi, 0x0fffffff
    ds_write_b64 v7, v[8:9]
    s_mov_b64 exec, -1
    v_and_b32 v10, 15, v1
    v_lshrrev_b32 v11, 4, v1
    v_and_b32 v12, 3, v10
    v_mul_u32_u24 v12, {CAS}, v12
    v_and_b32 v13, 12, v10
    v_lshlrev_b32 v13, 1, v13
    v_lshl_add_u32 v13, v11, 4, v13
    s_bfe_u32 s51, s38, 0x10001
    s_lshl_b32 s52, s51, 8
    s_mul_i32 s55, s40, {4*CAS}
    s_add_u32 s55, s55, s52
    s_add_u32 s55, s55, {CA}
    v_add3_u32 v14, v12, v13, s55
    v_lshlrev_b32 v15, 5, v10
    v_lshlrev_b32 v16, 4, v11
    v_sub_u32 v15, v15, v16
    s_add_u32 s56, s47, {496-192}
    s_sub_u32 s56, s56, s52
    v_add_u32 v15, s56, v15
    v_lshl_add_u32 v7, v1, 1, s49
    ;STAMP 1
    s_waitcnt vmcnt(2)
    ;STAMP 2
    s_mov_b64 exec, 0xffff
    ds_write_b16 v7, v6 offset:{CA}
    s_mov_b64 exec, -1
    s_waitcnt lgkmcnt(0)
    s_barrier
    ;STAMP 3
    s_waitcnt lgkmcnt(0)
    s_bitcmp1_b32 s38, 0
    s_cbranch_scc1 K2_CS1""")
    pool = [40+4*i for i in range(22)]
    for cs, cset in ((0, (0, 3, 4, 7)), (1, (1, 2, 5, 6))):
        if cs == 1: A("K2_CS1:")
        acc = {c: 20+4*n for n, c in enumerate(cset)}
        conv_body(A, cset, 14, 15, acc, pool)
        A(f"""s_cmp_eq_u32 s51, 0
        s_cselect_b32 s57, {cset[0]}, {cset[2]}
        s_cselect_b32 s58, {cset[1]}, {cset[3]}""")
        if cs == 0: A("s_branch K2_EPI")
    A(f"""K2_EPI:
    ;STAMP 4
    s_lshl_b32 s59, s38, 11
    s_add_u32 s59, s59, {RED}
    v_add_u32 v17, s59, v2
    s_xor_b32 s59, s38, 2
    s_lshl_b32 s59, s59, 11
    s_add_u32 s59, s59, {RED}
    v_add_u32 v18, s59, v2
    s_nop 2
    s_cmp_eq_u32 s51, 0
    s_cbranch_scc1 K2_RH0
    ds_write_b128 v17, v[20:23]
    ds_write_b128 v17, v[24:27] offset:1024
    s_waitcnt lgkmcnt(0)""")
    for i in range(8): A(f"v_mov_b32 v{20+i}, v{28+i}")
    A(f"""s_branch K2_RH1
    K2_RH0:
    ds_write_b128 v17, v[28:31]
    ds_write_b128 v17, v[32:35] offset:1024
    K2_RH1:
    s_waitcnt vmcnt(0) lgkmcnt(0)
    s_barrier
    ;STAMP 5
    ds_read_b128 v[28:31], v18
    ds_read_b128 v[32:35], v18 offset:1024
    v_lshlrev_b32 v40, 5, v10
    v_lshl_add_u32 v40, v11, 3, v40
    s_lshl_b32 s60, s40, 12
    s_add_u32 s60, s60, {XQ}
    s_add_u32 s61, s47, 480
    s_lshl_b32 s62, s57, 9
    s_lshl_b32 s63, s58, 9
    v_xor_b32 v41, 8, v40
    s_add_u32 s64, s61, s62
    v_add_u32 v42, s64, v41
    s_add_u32 s64, s61, s63
    v_add_u32 v43, s64, v41
    s_add_u32 s64, s60, s62
    v_add_u32 v44, s64, v40
    s_add_u32 s64, s60, s63
    v_add_u32 v45, s64, v40
    ds_read_b64 v[46:47], v42
    ds_read_b64 v[48:49], v43
    ds_read_b64 v[50:51], v44
    ds_read_b64 v[52:53], v45
    ds_read_b64 v[54:55], v44 offset:8192
    ds_read_b64 v[56:57], v45 offset:8192
    s_lshl_b32 s65, s54, 16
    s_and_b32 s66, s54, 0xffff0000
    s_cmp_eq_u32 s40, 0
    s_cselect_b32 s65, s65, s66
    s_mov_b32 s67, 0xffff0000
    s_waitcnt lgkmcnt(0)""")
    for t in range(2):
        kv, xx, qq, ac, ot = 46+2*t, 50+2*t, 54+2*t, 20+4*t, 28+4*t
        src = {3: (kv, 0), 2: (kv, 1), 1: (kv+1, 0), 0: (kv+1, 1)}
        for r in range(4):
            def unp(dst, reg, hi): return f"v_and_b32 v{dst}, s67, v{reg}" if hi else f"v_lshlrev_b32 v{dst}, 16, v{reg}"
            A(f"v_add_f32 v{ac+r}, v{ac+r}, v{ot+r}")
            A(unp(60, *src[r])); A(unp(61, xx+(r>>1), r&1)); A(unp(62, qq+(r>>1), r&1))
            A(f"v_fmac_f32 v{ac+r}, s65, v60")
            A(f"v_fma_f32 v{ac+r}, v{ac+r}, v62, v61")
        A(f"v_cvt_pk_bf16_f32 v{64+2*t}, v{ac}, v{ac+1}\nv_cvt_pk_bf16_f32 v{65+2*t}, v{ac+2}, v{ac+3}")
    A(f"""v_lshrrev_b32 v70, 2, v10
    v_and_b32 v71, 1, v11
    v_cmp_eq_u32 vcc, 0, v71
    v_mov_b32 v72, s58
    v_mov_b32 v73, s57
    v_permlane16_swap_b32 v64, v66
    v_permlane16_swap_b32 v65, v67
    v_cndmask_b32 v72, v72, v73, vcc
    v_lshl_add_u32 v70, v72, 2, v70
    v_mul_u32_u24 v70, 57344, v70
    v_and_b32 v73, 3, v10
    v_lshlrev_b32 v73, 5, v73
    v_lshrrev_b32 v74, 1, v11
    v_lshl_add_u32 v73, v74, 4, v73
    s_lshl_b32 s68, s42, 7
    s_add_u32 s68, s68, {WS_H}
    v_add_u32 v70, v70, v73
    buffer_store_dwordx4 v[64:67], v70, s[32:35], s68 offen
    {end}:
    s_endpgm""")
    return A.text(), 128, 512

def rt_fs(A):
    A("""s_and_b32 s36, s2, 7
    s_lshr_b32 s37, s2, 3
    s_mul_i32 s39, s37, 37
    s_lshr_b32 s39, s39, 8
    s_mul_i32 s40, s39, 7
    s_sub_u32 s40, s37, s40
    s_lshl_b32 s36, s36, 2
    s_add_u32 s39, s39, s36""")

def tr_pattern(A, dst0, dst1, lane, t0, t1, t2):
    A(f"""v_and_b32 v{t0}, 3, v{lane}
    v_bfe_u32 v{t1}, v{lane}, 2, 2
    v_lshrrev_b32 v{t2}, 5, v{lane}
    v_lshl_add_u32 v{t2}, v{t2}, 2, v{t1}
    v_lshlrev_b32 v{dst0}, 7, v{t2}
    v_lshrrev_b32 v{t1}, 1, v{t1}
    v_lshlrev_b32 v{t1}, 6, v{t1}
    v_add_u32 v{dst0}, v{dst0}, v{t1}
    v_bfe_u32 v{t1}, v{lane}, 4, 1
    v_lshl_add_u32 v{dst0}, v{t1}, 5, v{dst0}
    v_lshl_add_u32 v{dst0}, v{t0}, 3, v{dst0}
    v_xor_b32 v{dst1}, 64, v{dst0}""")

def dma_swz(A, dst, lane, t0, t1, rowstride):
    A(f"""v_lshrrev_b32 v{t0}, 3, v{lane}
    v_mul_u32_u24 v{t0}, {rowstride}, v{t0}
    v_and_b32 v{t1}, 7, v{lane}
    v_lshlrev_b32 v{t1}, 4, v{t1}
    v_bfe_u32 v{dst}, v{lane}, 4, 1
    v_lshlrev_b32 v{dst}, 6, v{dst}
    v_xor_b32 v{t1}, v{t1}, v{dst}
    v_add_u32 v{dst}, v{t0}, v{t1}""")

GC1 = -2.0*0.7978845608028654*1.4426950408889634
GC2 = GC1*0.044715
HT, WST3, ST3, CS3 = 0, 57344, 139264, 141312
K3_LDS = 143360
def k3():
    A = Asm(); end = "K3_END"; DEP = 10
    A(f"""s_cmp_ge_u32 s2, 224
    s_cbranch_scc1 {end}
    s_load_dwordx4 s[4:7], s[0:1], 56
    s_load_dwordx2 s[12:13], s[0:1], 104""")
    rt_fs(A)
    A(f"""v_lshrrev_b32 v4, 6, v0
    v_and_b32 v1, 63, v0
    s_nop 0
    v_readfirstlane_b32 s38, v4""")
    dma_swz(A, 2, 1, 5, 6, 128)
    A(f"""v_lshrrev_b32 v5, 2, v1
    v_mul_u32_u24 v5, 3584, v5
    v_and_b32 v6, 3, v1
    v_lshl_add_u32 v3, v6, 4, v5
    s_lshl_b32 s41, s40, 3
    s_add_u32 s41, s41, s38
    s_lshl_b32 s42, s41, 6
    v_add_u32 v3, s42, v3
    v_and_b32 v7, 31, v1
    v_lshl_add_u32 v8, v7, 1, s42
    s_waitcnt lgkmcnt(0)""")
    srd(A, 16, 4, 5, D*F*2); srd(A, 20, 6, 7, F*2); srd(A, 32, 12, 13, WS_BYTES)
    A(f"""buffer_load_ushort v9, v8, s[20:23], 0 offen
    s_mul_i32 s43, s39, 57344
    s_mul_i32 s44, s38, 7168
    s_add_u32 s43, s43, s44
    s_add_u32 s43, s43, {WS_H}
    s_add_u32 m0, s44, {HT}
    s_add_u32 s45, s43, 4096""")
    for i in range(4): A(f"buffer_load_dwordx4 v2, s[32:35], s43 offen offset:{1024*i} lds")
    A(f"s_add_u32 m0, s44, {HT+4096}\ns_nop 0")
    for i in range(3): A(f"buffer_load_dwordx4 v2, s[32:35], s45 offen offset:{1024*i} lds")
    A(f"""s_mul_i32 s46, s38, {DEP*1024}
    s_add_u32 s46, s46, {WST3}""")
    def dma(it):
        if it % 7 == 0:
            A(f"""s_add_u32 s47, s38, {it//7}
            s_and_b32 s47, s47, 3
            s_mul_i32 s47, s47, {7*57344}""")
        else:
            A(f"s_add_u32 s47, s47, 57344")
        A(f"""s_add_u32 m0, s46, {(it % DEP)*1024}
        s_nop 0
        buffer_load_dwordx4 v3, s[16:19], s47 offen lds""")
    for it in range(DEP): dma(it)
    tr_pattern(A, 10, 11, 1, 5, 6, 12)
    A(f"""s_and_b32 s48, s38, 4
    s_lshl_b32 s48, s48, 4
    v_xor_b32 v10, s48, v10
    v_xor_b32 v11, s48, v11
    v_and_b32 v5, 3, v1
    v_bfe_u32 v6, v1, 2, 2
    v_lshrrev_b32 v12, 5, v1
    v_lshl_add_u32 v12, v12, 2, v6
    v_lshlrev_b32 v12, 6, v12
    v_bfe_u32 v6, v1, 4, 1
    v_lshl_add_u32 v12, v6, 5, v12
    v_lshl_add_u32 v12, v5, 3, v12
    v_add_u32 v12, s46, v12
    s_mov_b32 s50, 0x3f803f80
    v_mov_b32 v16, 0
    v_mov_b32 v17, 0
    v_mov_b32 v18, 0
    v_mov_b32 v19, 0
    ;STAMP 1
    s_waitcnt vmcnt({DEP})
    s_barrier
    ;STAMP 2
    s_waitcnt lgkmcnt(0)""")
    ACC0, ACC1 = 32, 48
    buf = [(64, 68, 72), (76, 80, 84)]
    def reads(it):
        a, b0, b1 = buf[it & 1]
        if it % 7 == 0:
            A(f"""s_add_u32 s49, s38, {it//7}
            s_and_b32 s49, s49, 3
            s_mul_i32 s49, s49, {7*2048}
            v_add_u32 v13, s49, v10
            v_add_u32 v14, s49, v11""")
        so = (it % DEP)*1024; bo = HT + (it % 7)*2048
        A(f"""ds_read_b64_tr_b16 v[{a}:{a+1}], v12 offset:{so}
        ds_read_b64_tr_b16 v[{a+2}:{a+3}], v12 offset:{so+512}
        ds_read_b64_tr_b16 v[{b0}:{b0+1}], v13 offset:{bo}
        ds_read_b64_tr_b16 v[{b0+2}:{b0+3}], v13 offset:{bo+1024}
        ds_read_b64_tr_b16 v[{b1}:{b1+1}], v14 offset:{bo}
        ds_read_b64_tr_b16 v[{b1+2}:{b1+3}], v14 offset:{bo+1024}""")
    A(f"s_waitcnt vmcnt({DEP-1})")
    reads(0)
    for it in range(28):
        a, b0, b1 = buf[it & 1]
        if it + 1 < 28:
            A(f"s_waitcnt vmcnt({min(27, it+DEP-1)-(it+1)})")
            reads(it+1)
            A("s_waitcnt lgkmcnt(6)")
        else:
            A("s_waitcnt lgkmcnt(0)")
        c0 = v(ACC0, 16) if it else "0"; c1 = v(ACC1, 16) if it else "0"
        A(f"v_mfma_f32_32x32x16_bf16 {v(ACC0,16)}, {v(a,4)}, {v(b0,4)}, {c0}")
        if it + DEP < 28: dma(it + DEP)
        for i in range(4): A(f"v_dot2_f32_bf16 v16, v{a+i}, s50, v16")
        A(f"v_mfma_f32_32x32x16_bf16 {v(ACC1,16)}, {v(a,4)}, {v(b1,4)}, {c1}")
        if it < 7:
            for i in range(4):
                A(f"v_dot2_f32_bf16 v18, v{b0+i}, s50, v18\nv_dot2_f32_bf16 v19, v{b0+i}, v{b0+i}, v19")
    A(f""";STAMP 3
    s_nop 2
    v_mov_b32 v20, v16
    v_mov_b32 v21, v18
    v_mov_b32 v22, v19
    v_lshlrev_b32 v9, 16, v9
    s_nop 0
    v_permlane32_swap_b32 v16, v20
    v_permlane32_swap_b32 v18, v21
    v_permlane32_swap_b32 v19, v22
    s_lshl_b32 s51, s38, 8
    s_add_u32 s52, s51, {CS3}
    s_add_u32 s51, s51, {ST3}
    v_add_f32 v16, v16, v20
    v_add_f32 v18, v18, v21
    v_add_f32 v19, v19, v22
    v_lshl_add_u32 v23, v7, 2, s52
    v_lshl_add_u32 v24, v7, 3, s51
    ds_write_b32 v23, v16
    ds_write_b32 v23, v9 offset:128
    ds_write_b64 v24, v[18:19]
    s_waitcnt lgkmcnt(0)
    s_barrier
    ;STAMP 4
    s_waitcnt lgkmcnt(0)
    s_and_b32 s53, s38, 4
    s_lshl_b32 s53, s53, 8
    s_add_u32 s53, s53, {ST3}
    v_lshl_add_u32 v24, v7, 3, s53
    v_xor_b32 v25, 1024, v24""")
    assert ST3 % 2048 == 0
    for t, ad in ((0, 24), (1, 25)):
        for qd in range(4): A(f"ds_read_b64 v[{64+8*t+2*qd}:{65+8*t+2*qd}], v{ad} offset:{256*qd}")
    A(f"""v_lshrrev_b32 v26, 5, v1
    v_lshl_add_u32 v26, v26, 4, s52""")
    for a in range(4):
        A(f"ds_read_b128 v[{96+4*a}:{99+4*a}], v26 offset:{32*a}")
    A("s_waitcnt lgkmcnt(4)")
    for a in range(4):
        A(f"ds_read_b128 v[{112+4*a}:{115+4*a}], v26 offset:{128+32*a}")
    for t in range(2):
        b = 64+8*t
        A(f"""v_add_f32 v{b}, v{b}, v{b+2}
        v_add_f32 v{b+1}, v{b+1}, v{b+3}
        v_add_f32 v{b+4}, v{b+4}, v{b+6}
        v_add_f32 v{b+5}, v{b+5}, v{b+7}
        v_add_f32 v{b}, v{b}, v{b+4}
        v_add_f32 v{b+1}, v{b+1}, v{b+5}
        v_mul_f32 v{b}, {fhex(1/448)}, v{b}
        v_mul_f32 v{b+1}, {fhex(1/448)}, v{b+1}
        v_fma_f32 v{b+1}, -v{b}, v{b}, v{b+1}
        v_max_f32 v{b+1}, 0, v{b+1}
        v_add_f32 v{b+2}, {fhex(1e-5)}, v{b+1}
        v_rsq_f32 v{b+2}, v{b+2}
        s_nop 0
        v_mul_f32 v{b+3}, v{b+2}, v{b+2}
        v_mul_f32 v{b+3}, v{b+3}, v{b+1}
        v_add_f32 v{b+3}, {fhex(1e-5)}, v{b+3}
        v_rsq_f32 v{b+3}, v{b+3}
        s_nop 0
        v_mul_f32 v{b+2}, v{b+2}, v{b+3}
        v_mul_f32 v{b+3}, -v{b}, v{b+2}""")
    A(f"""s_mov_b32 s54, {fhex(GC2)}
    v_mov_b32 v27, {fhex(GC1)}
    s_mul_i32 s55, s39, 229376
    s_lshl_b32 s56, s41, 12
    s_add_u32 s55, s55, s56
    s_add_u32 s55, s55, {WS_HID}
    s_and_b32 s56, s38, 4
    s_lshl_b32 s56, s56, 8
    v_lshl_add_u32 v28, v1, 4, s56
    v_xor_b32 v29, 1024, v28
    s_waitcnt lgkmcnt(0)""")
    for t in range(2):
        acc = (ACC0, ACC1)[t]; r, n = 64+8*t+2, 64+8*t+3
        for g in range(4):
            T = [80, 84, 88]
            for i in range(4):
                e = 4*g+i
                A(f"v_fma_f32 v{80+i}, v{n}, v{96+e}, v{112+e}")
            for i in range(4): A(f"v_fma_f32 v{acc+4*g+i}, v{acc+4*g+i}, v{r}, v{80+i}")
            for i in range(4): A(f"v_mul_f32 v{80+i}, v{acc+4*g+i}, v{acc+4*g+i}")
            for i in range(4): A(f"v_fma_f32 v{80+i}, v{80+i}, s54, v27")
            for i in range(4): A(f"v_mul_f32 v{80+i}, v{80+i}, v{acc+4*g+i}")
            for i in range(4): A(f"v_exp_f32 v{80+i}, v{80+i}")
            for i in range(4): A(f"v_add_f32 v{80+i}, 1.0, v{80+i}")
            for i in range(4): A(f"v_rcp_f32 v{80+i}, v{80+i}")
            for i in range(4): A(f"v_mul_f32 v{acc+4*g+i}, v{acc+4*g+i}, v{80+i}")
            o = 128+8*t+2*g
            A(f"v_cvt_pk_bf16_f32 v{o}, v{acc+4*g}, v{acc+4*g+1}\nv_cvt_pk_bf16_f32 v{o+1}, v{acc+4*g+2}, v{acc+4*g+3}")
            if g & 1:
                A(f"buffer_store_dwordx4 v[{o-2}:{o+1}], v{28+t}, s[32:35], s55 offen offset:{2048*(g>>1)}")
    A(f"{end}:\ns_endpgm")
    return A.text(), 144, 512

WST4, P4, HR4 = 0, 65536, 139264
K4_LDS = 147456
def k4():
    A = Asm(); end = "K4_END"; DEP = 4
    A(f"""s_cmp_ge_u32 s2, 224
    s_cbranch_scc1 {end}
    s_load_dwordx4 s[4:7], s[0:1], 72
    s_load_dwordx2 s[8:9], s[0:1], 88
    s_load_dwordx2 s[12:13], s[0:1], 104""")
    rt_fs(A)
    A(f"""v_lshrrev_b32 v4, 6, v0
    v_and_b32 v1, 63, v0
    s_lshl_b32 s41, s40, 7
    v_readfirstlane_b32 s38, v4""")
    dma_swz(A, 2, 1, 5, 6, 128)
    dma_swz(A, 3, 1, 5, 6, 896)
    A(f"""v_add_u32 v3, s41, v3
    v_lshlrev_b32 v4, 4, v1
    v_and_b32 v7, 7, v1
    v_lshl_add_u32 v8, v7, 4, s41
    s_waitcnt lgkmcnt(0)""")
    srd(A, 16, 4, 5, D*F*2); srd(A, 20, 6, 7, D*2); srd(A, 24, 8, 9, NBX); srd(A, 32, 12, 13, WS_BYTES)
    A(f"""buffer_load_dwordx4 v[16:19], v8, s[20:23], 0 offen
    s_mul_i32 s43, s39, 57344
    s_lshl_b32 s44, s40, 13
    s_add_u32 s43, s43, s44
    s_lshl_b32 s44, s38, 10
    s_add_u32 s43, s43, s44
    s_add_u32 s43, s43, {WS_H}
    s_add_u32 m0, s44, {HR4}
    s_mul_i32 s45, s39, 229376
    buffer_load_dwordx4 v2, s[32:35], s43 offen lds
    s_mul_i32 s46, s38, {14*2048}
    s_add_u32 s45, s45, s46
    s_add_u32 s45, s45, {WS_HID}
    s_mul_i32 s47, s38, {224*896}
    s_lshl_b32 s46, s38, 13
    s_add_u32 s46, s46, {WST4}""")
    NB = DEP+1
    BB = [160+8*i for i in range(NB)]
    def ld(it):
        b = BB[it % NB]
        A(f"""s_add_u32 m0, s46, {(it % DEP)*2048}
        s_add_u32 s48, s47, {8*896}
        buffer_load_dwordx4 v3, s[16:19], s47 offen lds
        s_add_u32 m0, s46, {(it % DEP)*2048+1024}
        s_add_u32 s47, s47, {16*896}
        buffer_load_dwordx4 v3, s[16:19], s48 offen lds
        buffer_load_dwordx4 v[{b}:{b+3}], v4, s[32:35], s45 offen
        buffer_load_dwordx4 v[{b+4}:{b+7}], v4, s[32:35], s45 offen offset:1024
        s_add_u32 s45, s45, 2048""")
    for it in range(DEP): ld(it)
    tr_pattern(A, 10, 11, 1, 5, 6, 12)
    A(f"""v_add_u32 v12, s46, v10
    v_add_u32 v13, s46, v11""")
    ACC = {(0, 0): 32, (0, 1): 48, (1, 0): 64, (1, 1): 80}
    AB = [(96, 100), (104, 108)]
    def reads(it):
        a0, a1 = AB[it & 1]; so = (it % DEP)*2048
        A(f"""ds_read_b64_tr_b16 v[{a0}:{a0+1}], v12 offset:{so}
        ds_read_b64_tr_b16 v[{a0+2}:{a0+3}], v12 offset:{so+1024}
        ds_read_b64_tr_b16 v[{a1}:{a1+1}], v13 offset:{so}
        ds_read_b64_tr_b16 v[{a1+2}:{a1+3}], v13 offset:{so+1024}""")
    A(f";STAMP 1\ns_waitcnt vmcnt({4*(DEP-1)})\n;STAMP 2\ns_waitcnt lgkmcnt(0)")
    reads(0)
    for it in range(14):
        a = AB[it & 1]; b = BB[it % NB]
        if it + 1 < 14:
            A(f"s_waitcnt vmcnt({4*(min(13, it+DEP-1)-(it+1))})")
            reads(it+1)
            A("s_waitcnt lgkmcnt(4)")
        else:
            A("s_waitcnt lgkmcnt(0)")
        for dt in range(2):
            for rt in range(2):
                c = v(ACC[dt, rt], 16) if it else "0"
                A(f"v_mfma_f32_32x32x16_bf16 {v(ACC[dt,rt],16)}, {v(a[dt],4)}, {v(b+4*rt,4)}, {c}")
                if dt == 0 and rt == 0 and it + DEP < 14: ld(it + DEP)
    A(f""";STAMP 3
    s_barrier
    ;STAMP 4
    s_lshr_b32 s50, s38, 2
    s_bfe_u32 s51, s38, 0x10001
    s_and_b32 s52, s38, 1
    s_lshl_b32 s52, s52, 1
    s_lshl_b32 s53, s50, 2
    s_add_u32 s53, s53, s52
    s_lshl_b32 s54, s53, 10
    s_add_u32 s54, s54, {HR4}
    s_lshl_b32 s55, s51, 6
    v_xor_b32 v14, s55, v10
    v_add_u32 v14, s54, v14
    ds_read_b64_tr_b16 v[20:21], v14
    ds_read_b64_tr_b16 v[22:23], v14 offset:1024
    v_and_b32 v5, 31, v1
    v_lshlrev_b32 v5, 7, v5
    v_lshrrev_b32 v6, 5, v1
    v_lshl_add_u32 v5, v6, 3, v5
    s_lshl_b32 s56, s38, 13
    s_add_u32 s56, s56, {P4}
    v_add_u32 v15, s56, v5""")
    for pc in range(8):
        A(f"v_xor_b32 v6, {pc}, v7\nv_lshl_add_u32 v{112+pc}, v6, 4, v15")
    A(f"""s_lshl_b32 s57, s51, 12
    s_add_u32 s57, s57, {P4+8*8192}
    v_add_u32 v5, s57, v5
    v_xor_b32 v6, s53, v7
    v_lshl_add_u32 v24, v6, 4, v5
    v_xor_b32 v25, 16, v24
    s_waitcnt lgkmcnt(0)
    ds_write_b64 v24, v[20:21]
    ds_write_b64 v25, v[22:23]""")
    n = 0
    for dt in range(2):
        for rt in range(2):
            for a in range(4):
                r = ACC[dt, rt]+4*a; o = 120+2*(n % 8); n += 1
                A(f"""v_cvt_pk_bf16_f32 v{o}, v{r}, v{r+1}
                v_cvt_pk_bf16_f32 v{o+1}, v{r+2}, v{r+3}
                ds_write_b64 v{112+4*dt+a}, v[{o}:{o+1}] offset:{4096*rt}""")
                if n % 8 == 0: A("s_waitcnt lgkmcnt(0)")
    A(f"""s_barrier
    ;STAMP 5
    s_waitcnt lgkmcnt(0)
    v_lshrrev_b32 v5, 3, v0
    v_and_b32 v6, 7, v5
    v_xor_b32 v6, v6, v7
    v_lshlrev_b32 v26, 7, v5
    v_lshl_add_u32 v26, v6, 4, v26
    v_add_u32 v26, {P4}, v26
    v_add_u32 v27, 32768, v26""")
    for i in range(9):
        A(f"ds_read_b128 v[{32+4*i}:{35+4*i}], v{26 if i < 4 else 27} offset:{8192*(i if i < 4 else i-4)}")
    A(f"""s_lshl_b32 s58, s39, 6
    v_add_u32 v5, s58, v5
    v_mul_u32_u24 v5, 896, v5
    v_add_u32 v5, v5, v8
    s_mov_b32 s59, 0xffff0000
    s_mov_b32 s60, 0x3f80
    s_mov_b32 s61, 0x3f800000""")
    for i in range(4):
        A(f"v_lshlrev_b32 v{72+2*i}, 16, v{16+i}\nv_and_b32 v{73+2*i}, s59, v{16+i}")
    for i in range(9):
        A(f"s_waitcnt lgkmcnt({8-i})")
        for d in range(4):
            A(f"v_dot2_f32_bf16 v{72+2*d}, v{32+4*i+d}, s60, v{72+2*d}\nv_dot2_f32_bf16 v{73+2*d}, v{32+4*i+d}, s61, v{73+2*d}")
    A("s_nop 2")
    for d in range(4): A(f"v_cvt_pk_bf16_f32 v{80+d}, v{72+2*d}, v{73+2*d}")
    A(f"""buffer_store_dwordx4 v[80:83], v5, s[24:27], 0 offen
    {end}:
    s_endpgm""")
    return A.text(), 200, 512

def stamp(text, kid, end):
    lines = text.split("\n")
    out = []; done = False
    for l in lines:
        t = l.strip()
        if t.startswith(";STAMP"):
            n = int(t.split()[1])
            out.append(f"    s_memrealtime s[{70+2*n}:{71+2*n}]")
        elif t == end + ":":
            out += [f"{end}_S:", "    s_memrealtime s[82:83]", "    s_waitcnt vmcnt(0) lgkmcnt(0)", "    s_memrealtime s[84:85]", "    s_memtime s[88:89]", "    s_waitcnt lgkmcnt(0)",
                    "    s_sub_u32 s88, s88, s86"]
            out += [f"    v_mov_b32 v{2+i}, s{70+2*i}" for i in range(8)]
            out += ["    v_mov_b32 v10, s88",
                    "    s_lshl_b32 s94, s95, 3", "    s_add_u32 s94, s94, s38", "    s_lshl_b32 s94, s94, 6",
                    f"    s_add_u32 s94, s94, {WS_STAMP + kid*256*8*64}", "    v_mov_b32 v12, 0", "    s_mov_b64 exec, 1",
                    "    buffer_store_dwordx4 v[2:5], v12, s[32:35], s94 offen",
                    "    buffer_store_dwordx4 v[6:9], v12, s[32:35], s94 offen offset:16",
                    "    buffer_store_dword v10, v12, s[32:35], s94 offen offset:32", l]
        elif done and t == f"s_cbranch_scc1 {end}":
            out.append(f"    s_cbranch_scc1 {end}_S")
        else:
            out.append(l)
            if not done and t == f"s_cbranch_scc1 {end}":
                out += ["    s_memrealtime s[70:71]", "    s_memtime s[86:87]", "    s_mov_b32 s95, s2"]
                out += [f"    s_mov_b32 s{70+2*i}, 0" for i in range(1, 6)]
                done = True
    return "\n".join(out)

def build(extra=0):
    ks = [("p1_kernel", k1(), 256, 1024), ("conv_kernel", k2(), 224, K2_LDS), ("g1_kernel", k3(), 224, K3_LDS), ("g2_kernel", k4(), 224, K4_LDS)]
    if STAMP:
        ks = [(n, (stamp(t, i, f"K{i+1}_END"), vg, blk), g, l) for i, (n, (t, vg, blk), g, l) in enumerate(ks)]
    hdr = open("sequential_preLN__ssm_conv_h3__mixer_channel_mlp__prompt.s.ref").read().split("; Override launch")[0]
    out = hdr
    for name, (t, vg, blk), grid, lds in ks:
        out += f"; @launch kernel={name} grid=({grid},1,1) block=({blk},1,1) lds={lds}\n"
    for i in range(extra):
        out += f"; @launch kernel=nop_kernel grid=(256,1,1) block=(512,1,1) lds=0\n"
    out += '.amdgcn_target "amdgcn-amd-amdhsa--gfx950"\n'
    for name, (t, vg, blk), grid, lds in ks:
        out += kernel_header(name) + t
    if extra: out += kernel_header("nop_kernel") + "    s_endpgm\n"
    for name, (t, vg, blk), grid, lds in ks:
        out += kernel_desc(name, vg)
    if extra: out += kernel_desc("nop_kernel", 8)
    return out

if __name__ == "__main__":
    path = sys.argv[1] if len(sys.argv) > 1 else "sequential_preLN__ssm_conv_h3__mixer_channel_mlp__prompt.s"
    extra = int(sys.argv[2]) if len(sys.argv) > 2 else 0
    STAMP = "--stamp" in sys.argv
    open(path, "w").write(build(extra))
```

```python
import sys, gen_v1
from asmlib import *
def probe(kind, off, kb_per_wave, ptr=104):
    A = Asm()
    A(f"""s_cmp_ge_u32 s2, 256
    s_cbranch_scc1 PE
    s_load_dwordx2 s[4:5], s[0:1], {ptr}
    v_lshlrev_b32 v1, 4, v0
    s_mul_i32 s8, s2, {kb_per_wave*8192}
    s_add_u32 s8, s8, {off}
    s_waitcnt lgkmcnt(0)
    s_and_b32 s5, s5, 0xffff
    s_mov_b32 s6, {0x10000000 if ptr == 104 else 1835008}
    s_mov_b32 s7, 0x20000""")
    for i in range(kb_per_wave):
        if kind == "rd": A(f"buffer_load_dwordx4 v[4:7], v1, s[4:7], s8 offen")
        elif kind == "wr": A(f"buffer_store_dwordx4 v[4:7], v1, s[4:7], s8 offen")
        elif kind == "wr1": A(f"buffer_store_dwordx4 v[4:7], v1, s[4:7], s8 offen sc1")
        A("s_add_u32 s8, s8, 8192")
    A("s_waitcnt vmcnt(0)\nPE:\ns_endpgm")
    return A.text()
def build(kind, off, kb, ptr=104):
    base = gen_v1.build(0)
    i = base.index("; @launch kernel=p1_kernel")
    base = base[:i] + "; @launch kernel=probe_kernel grid=(256,1,1) block=(512,1,1) lds=0\n" + base[i:]
    i = base.index('.section .rodata')
    base = base[:i] + kernel_header("probe_kernel") + probe(kind, off, kb, ptr) + base[i:] + kernel_desc("probe_kernel", 16)
    return base
open("../cdna_kernels/pr_0.s", "w").write(build("rd", 0x4000000, 0))
open("../cdna_kernels/pr_rd16_lo.s", "w").write(build("rd", 0x2000000, 8))
open("../cdna_kernels/pr_rd16_hi.s", "w").write(build("rd", 0xf000000, 8))
open("../cdna_kernels/pr_rd64.s", "w").write(build("rd", 0x4000000, 32))
open("../cdna_kernels/pr_wr16.s", "w").write(build("wr1", 0x2000000, 8))
open("../cdna_kernels/pr_bx.s", "w").write(build("rd", 0, 1, ptr=48))
```

```python
import sys, gen_v1
from asmlib import *
def probe(kind, off, kb_per_wave, ptr=104):
    A = Asm()
    A(f"""s_cmp_ge_u32 s2, 256
    s_cbranch_scc1 PE
    s_load_dwordx2 s[4:5], s[0:1], {ptr}
    v_lshlrev_b32 v1, 4, v0
    s_mul_i32 s8, s2, {kb_per_wave*8192}
    s_add_u32 s8, s8, {off}
    s_waitcnt lgkmcnt(0)
    s_and_b32 s5, s5, 0xffff
    s_mov_b32 s6, {0x10000000 if ptr == 104 else 1835008}
    s_mov_b32 s7, 0x20000""")
    for i in range(kb_per_wave):
        if kind == "rd": A(f"buffer_load_dwordx4 v[4:7], v1, s[4:7], s8 offen")
        elif kind == "wr": A(f"buffer_store_dwordx4 v[4:7], v1, s[4:7], s8 offen")
        elif kind == "wr1": A(f"buffer_store_dwordx4 v[4:7], v1, s[4:7], s8 offen sc1")
        A("s_add_u32 s8, s8, 8192")
    A("s_waitcnt vmcnt(0)\nPE:\ns_endpgm")
    return A.text()
def build(kind, off, kb, ptr=104):
    base = gen_v1.build(0)
    i = base.index(".amdgcn_target")
    base = base[:i] + "; @launch kernel=probe_kernel grid=(256,1,1) block=(512,1,1) lds=0\n" + base[i:]
    i = base.index('.section .rodata')
    base = base[:i] + kernel_header("probe_kernel") + probe(kind, off, kb, ptr) + base[i:] + kernel_desc("probe_kernel", 16)
    return base

open("../cdna_kernels/pr_0.s", "w").write(build("rd", 0x4000000, 0))
open("../cdna_kernels/pr_rd4.s", "w").write(build("rd", 0x2000000, 2))
open("../cdna_kernels/pr_rd16.s", "w").write(build("rd", 0x2000000, 8))
open("../cdna_kernels/pr_rd32.s", "w").write(build("rd", 0x4000000, 16))
open("../cdna_kernels/pr_wr16.s", "w").write(build("wr1", 0x2000000, 8))
open("../cdna_kernels/pr_bx.s", "w").write(build("rd", 0, 1, ptr=48))
```

```python
import sys, gen_v1
from asmlib import *
def probe(kind, n):
    A = Asm()
    if kind == "line":
        for i in range(n): A("v_mov_b32 v1, 0x12345678")
    elif kind == "loop":
        A("s_mov_b32 s4, 0\nPL:")
        for i in range(32): A("v_mov_b32 v1, 0x12345678")
        A(f"s_add_u32 s4, s4, 1\ns_cmp_lt_u32 s4, {n//32}\ns_cbranch_scc1 PL")
    elif kind == "jump":
        for i in range(n):
            A(f"s_branch PJ{i}")
            for j in range(15): A("s_nop 0")
            A(f"PJ{i}:")
    A("s_endpgm")
    return A.text()
def build(kind, n, blk=64):
    base = gen_v1.build(0)
    i = base.index(".amdgcn_target")
    base = base[:i] + f"; @launch kernel=probe_kernel grid=(256,1,1) block=({blk},1,1) lds=0\n" + base[i:]
    i = base.index('.section .rodata')
    base = base[:i] + kernel_header("probe_kernel") + probe(kind, n) + base[i:] + kernel_desc("probe_kernel", 16)
    return base
open("../cdna_kernels/pi_0.s", "w").write(build("line", 1))
open("../cdna_kernels/pi_00.s", "w").write(build("line", 1))
open("../cdna_kernels/pi_line.s", "w").write(build("line", 2048))
open("../cdna_kernels/pi_loop.s", "w").write(build("loop", 2048))
open("../cdna_kernels/pi_jump.s", "w").write(build("jump", 64))
open("../cdna_kernels/pi_line8.s", "w").write(build("line", 2048, 512))
```

```python
class Asm:
    def __init__(self):
        self.lines = []
        self.nlab = 0
    def __call__(self, s=""):
        for l in s.strip("\n").split("\n"):
            l = l.strip()
            if l == "": continue
            if l.endswith(":") and " " not in l:
                self.lines.append(l)
            else:
                self.lines.append("    " + l)
    def c(self, s):
        self.lines.append("    ; " + s)
    def label(self, base="L"):
        self.nlab += 1
        return f"{base}_{self.nlab}"
    def text(self):
        return "\n".join(self.lines) + "\n"

def v(a, n=1):
    return f"v{a}" if n == 1 else f"v[{a}:{a+n-1}]"
def s(a, n=1):
    return f"s{a}" if n == 1 else f"s[{a}:{a+n-1}]"
def f2u(x):
    import struct
    return struct.unpack("<I", struct.pack("<f", x))[0]
def fhex(x):
    return hex(f2u(x))

def kernel_header(name):
    return f""".text
.globl {name}
.p2align 8
.type {name},@function
{name}:
"""
def kernel_desc(name, vgpr, sgpr=102, acc=None):
    acc = acc if acc is not None else (vgpr + 3)//4*4
    return f""".section .rodata,"a"
.p2align 6
.amdhsa_kernel {name}
  .amdhsa_next_free_vgpr {vgpr}
  .amdhsa_next_free_sgpr {sgpr}
  .amdhsa_accum_offset {acc}
  .amdhsa_group_segment_fixed_size 0
  .amdhsa_kernarg_size 112
  .amdhsa_user_sgpr_count 2
  .amdhsa_user_sgpr_kernarg_segment_ptr 1
  .amdhsa_system_sgpr_workgroup_id_x 1
.end_amdhsa_kernel
"""

class Cnt:
    def __init__(self, A, name, maxn):
        self.A = A; self.name = name; self.maxn = maxn; self.issued = 0; self.done = 0
    def issue(self, n=1):
        if self.issued + n - self.done > self.maxn:
            self.wait(self.issued + n - self.maxn)
        self.issued += n
        return self.issued
    def wait(self, tok):
        if tok is None: return
        if tok > self.done:
            self.A(f"s_waitcnt {self.name}({self.issued - tok})")
            self.done = tok
    def waitall(self, force=False):
        if force or self.issued > self.done:
            self.A(f"s_waitcnt {self.name}(0)")
        self.done = self.issued
    def state(self): return (self.issued, self.done)
    def restore(self, st): self.issued, self.done = st
```

```python
import sys
from asmlib import *

S, D, F = 2048, 448, 1792
NBX = S*D*2
WS_T, WS_H, WS_HID, WS_S, WS_F = 0, 0x400000, 0x600000, 0xD00000, 0xD10000
F_EP, F_A, F_2, F_GO, F_3, F_XW = WS_F, WS_F+0x1000, WS_F+0x2000, WS_F+0x24000, WS_F+0x28000, WS_F+0x30000
WS_STAMP = 0xE00000
WS_BYTES = 0x1000000
TAGK = 0x9E3779B9
CA, CAS = 0, 4160
XK, XKS = 33280, 4608
XX, SS, RED, WST = 42496, 50688, 67072, 99840
KT, VT, XT, OUT = 42496, 42496+8352, 42496+8352+7424, 42496+23296
NSL = 7
MISC = 157184
ST, CS = MISC+0, MISC+2048
HT, W2B, PP = 0, 57344, 57344
LDS_BYTES = 163840
GC1 = -2.0*0.7978845608028654*1.4426950408889634
GC2 = GC1*0.044715
NAME = "sequential_preLN__ssm_conv_h3__mixer_channel_mlp__prompt_kernel"

class Cfg:
    stamp = False
    sc_t = "sc1"
    sc_fa = "sc1"
    sc_go = "sc1"
    sc_hid = "sc1"
    sc_f3 = "sc1"
    n47 = 7
    nb0 = 6
    timeout = 200000
    f0pos = 0.5
    codewarm = True

sTAG = 3
K_, V_, X_, WS_, HK_, W1_, W2_, SM_, O_ = 16, 20, 24, 28, 32, 36, 40, 44, 48
sXG, sM, sW, sJ, sRT, sFS = 52, 53, 54, 55, 56, 57

def srd(A, r, lo, hi, nbytes):
    A(f"""s_mov_b32 s{r}, s{lo}
    s_and_b32 s{r+1}, s{hi}, 0xffff
    s_mov_b32 s{r+2}, {nbytes}
    s_mov_b32 s{r+3}, 0x20000""")
def R(r): return f"s[{r}:{r+3}]"

def tr_pattern(A, dst0, dst1, lane, t0, t1, t2):
    A(f"""v_and_b32 v{t0}, 3, v{lane}
    v_bfe_u32 v{t1}, v{lane}, 2, 2
    v_lshrrev_b32 v{t2}, 5, v{lane}
    v_lshl_add_u32 v{t2}, v{t2}, 2, v{t1}
    v_lshlrev_b32 v{dst0}, 7, v{t2}
    v_lshrrev_b32 v{t1}, 1, v{t1}
    v_lshlrev_b32 v{t1}, 6, v{t1}
    v_add_u32 v{dst0}, v{dst0}, v{t1}
    v_bfe_u32 v{t1}, v{lane}, 4, 1
    v_lshl_add_u32 v{dst0}, v{t1}, 5, v{dst0}
    v_lshl_add_u32 v{dst0}, v{t0}, 3, v{dst0}
    v_xor_b32 v{dst1}, 64, v{dst0}""")

def dma_swz(A, dst, lane, t0, t1, rowstride):
    A(f"""v_lshrrev_b32 v{t0}, 3, v{lane}
    v_mul_u32_u24 v{t0}, {rowstride}, v{t0}
    v_and_b32 v{t1}, 7, v{lane}
    v_lshlrev_b32 v{t1}, 4, v{t1}
    v_bfe_u32 v{dst}, v{lane}, 4, 1
    v_lshlrev_b32 v{dst}, 6, v{dst}
    v_xor_b32 v{t1}, v{t1}, v{dst}
    v_add_u32 v{dst}, v{t0}, v{t1}""")

def conv_body(A, lg, cset, vA, vB, acc, pool, lookahead=13):
    mf = []
    for i in range(4):
        prs = [(vv, c-vv, c) for c in cset for vv in range(c+1)]
        prs.sort(key=lambda t: (max(t[0], t[1]), t[2], t[0]))
        for vv, e, c in prs: mf.append((("A", i, vv), ("B", i, e), c))
    order = []
    for a, b, c in mf:
        for x in (a, b):
            if x not in order: order.append(x)
    last = {}
    for n, (a, b, c) in enumerate(mf): last[a] = n; last[b] = n
    free = list(pool); reg = {}; tok = {}; nxt = 0; first = set()
    def issue(x):
        r = free.pop(0); reg[x] = r
        k, i, z = x
        if k == "A":
            lg.issue(); A(f"ds_read_b64 v[{r}:{r+1}], v{vA} offset:{64*i+512*z}")
            tok[x] = lg.issue(); A(f"ds_read_b64 v[{r+2}:{r+3}], v{vA} offset:{64*i+512*z+8}")
        else:
            tok[x] = lg.issue(); A(f"ds_read_b128 v[{r}:{r+3}], v{vB} offset:{512*z+64*(3-i)}")
    for n, (a, b, c) in enumerate(mf):
        while a not in reg or b not in reg:
            issue(order[nxt]); nxt += 1
        k = 0
        while nxt < len(order) and free and lg.issued - lg.done + 2 <= lookahead and (k < 1 or n < 4):
            issue(order[nxt]); nxt += 1; k += 1
        lg.wait(max(tok[a], tok[b]))
        cin = v(acc[c], 4) if c in first else "0"
        first.add(c)
        A(f"v_mfma_f32_16x16x32_bf16 {v(acc[c],4)}, {v(reg[a],4)}, {v(reg[b],4)}, {cin}")
        for x in (a, b):
            if last[x] == n: free.append(reg[x])

def gen(cfg):
    A = Asm(); vm = Cnt(A, "vmcnt", 63); lg = Cnt(A, "lgkmcnt", 15)
    def stamp(n):
        if cfg.stamp:
            assert lg.issued == lg.done
            A(f"s_memrealtime s[{70+2*n}:{71+2*n}]\ns_waitcnt lgkmcnt(0)")
    def poll(voff, soff, nm, mask=None, vdat=15):
        L = A.label("POLL"); Dn = A.label("POLLD")
        assert vm.issued >= vm.done
        A(f"s_mov_b32 s60, 0")
        if mask: A(mask)
        A(f"""{L}:
        buffer_load_dword v{vdat}, v{voff}, {R(WS_)}, {soff} offen sc1
        s_waitcnt vmcnt(0)
        v_cmp_ne_u32 vcc, s{sTAG}, v{vdat}
        s_cmp_eq_u64 vcc, 0
        s_cbranch_scc1 {Dn}
        s_add_u32 s60, s60, 1
        s_cmp_lt_u32 s60, {cfg.timeout}
        s_cbranch_scc1 {L}
        {Dn}:""")
        if mask: A("s_mov_b64 exec, -1")
    A(f"""s_cmp_ge_u32 s2, 256
    s_cbranch_scc1 END
    s_load_dwordx4 s[4:7], s[0:1], 0
    s_load_dwordx4 s[8:11], s[0:1], 16
    s_load_dwordx2 s[12:13], s[0:1], 104
    s_load_dwordx4 s[64:67], s[0:1], 32""")
    if cfg.stamp:
        A("s_memrealtime s[70:71]\ns_memtime s[100:101]")
        for i in range(1, 14): A(f"s_mov_b32 s{70+2*i}, 0")
    A(f"""s_and_b32 s{sXG}, s2, 7
    s_lshr_b32 s{sM}, s2, 3
    v_and_b32 v1, 63, v0
    v_lshrrev_b32 v4, 6, v0
    v_mul_u32_u24 v5, 37, v1
    v_readfirstlane_b32 s{sW}, v4
    v_lshrrev_b32 v5, 8, v5
    v_mul_u32_u24 v6, 7, v5
    v_sub_u32 v6, v1, v6
    v_mul_u32_u24 v3, 896, v5
    v_lshl_add_u32 v3, v6, 4, v3
    s_mul_i32 s58, s{sM}, {64*896}
    s_mul_i32 s59, s{sXG}, 112
    s_add_u32 s58, s58, s59
    v_add_u32 v3, s58, v3
    v_lshlrev_b32 v2, 4, v1
    s_mul_i32 s61, s{sW}, {8*896}
    s_mul_i32 s62, s{sW}, 928
    s_lshl_b32 s63, s{sM}, 6
    s_lshl_b32 s59, s{sXG}, 3
    s_add_u32 s63, s63, s59
    s_add_u32 s63, s63, s{sW}
    s_mul_i32 s68, s63, 896
    v_add_u32 v7, s68, v2
    v_cmp_gt_u32 vcc, 56, v1
    v_mov_b32 v8, 0x80000000
    s_mul_i32 s{sJ}, s{sXG}, 28
    s_add_u32 s{sJ}, s{sJ}, s{sM}
    v_cndmask_b32 v7, v8, v7, vcc
    s_mov_b32 s59, {F_EP}
    s_waitcnt lgkmcnt(0)
    s_load_dword s{sTAG}, s[12:13], s59""")
    srd(A, K_, 6, 7, NBX); srd(A, V_, 8, 9, NBX); srd(A, X_, 4, 5, NBX)
    A(f"""s_mov_b32 exec_hi, 0x00ffffff
    s_add_u32 m0, s62, {KT+928}
    s_nop 0
    buffer_load_dwordx4 v3, {R(K_)}, s61 offen lds
    s_add_u32 m0, s62, {VT}
    s_nop 0
    buffer_load_dwordx4 v3, {R(V_)}, s61 offen lds
    s_add_u32 m0, s62, {XT}
    s_cmp_eq_u32 s{sW}, 7
    buffer_load_dwordx4 v3, {R(X_)}, s61 offen lds
    s_cbranch_scc0 P1_NH
    v_add_u32 v4, {(-7168)&0xffffffff}, v3
    s_mov_b32 m0, {KT}
    s_nop 0
    buffer_load_dwordx4 v4, {R(K_)}, 0 offen lds
    s_mov_b64 exec, -1
    s_branch P1_H
    P1_NH:
    s_mov_b64 exec, -1""")
    srd(A, SM_, 10, 11, D*8)
    A(f"""v_bfe_u32 v4, v1, 5, 1
    v_and_b32 v5, 3, v1
    v_lshl_add_u32 v4, v4, 2, v5
    s_mul_i32 s59, s{sXG}, 56
    s_lshl_b32 s69, s{sW}, 3
    s_add_u32 s59, s59, s69
    v_add_lshl_u32 v4, v4, s59, 3
    buffer_load_dwordx2 v[10:11], v4, {R(SM_)}, 0 offen
    P1_H:""")
    vm.issue(3); tKVX = vm.issue()
    tXR = vm.issue(); A(f"buffer_load_dwordx4 v[16:19], v7, {R(X_)}, 0 offen")
    srd(A, WS_, 12, 13, WS_BYTES)
    A(f"""s_cmp_ge_u32 s{sM}, 28
    s_cbranch_scc1 P1_HLP
    s_lshr_b32 s58, s{sW}, 2
    s_and_b32 s59, s{sW}, 3
    s_lshl_b32 s68, s{sJ}, 1
    s_add_u32 s68, s68, s58
    s_lshl_b32 s68, s68, 12
    s_add_u32 s64, s64, s68
    s_addc_u32 s65, s65, 0""")
    srd(A, HK_, 64, 65, 4096)
    A(f"""s_mul_i32 s69, s{sW}, {CAS}
    s_add_u32 m0, s69, {CA+32}
    s_lshl_b32 s59, s59, 1
    s_add_u32 s59, s59, 2
    v_add_u32 v4, s59, v2""")
    for p in range(4): A(f"buffer_load_dwordx4 v4, {R(HK_)}, 0 offen offset:{1024*p} lds")
    A(f"""v_lshl_add_u32 v5, v1, 1, s59
    v_add_u32 v5, {(-32)&0xffffffff}, v5
    buffer_load_ushort v12, v5, {R(HK_)}, 0 offen
    v_lshl_add_u32 v13, v1, 1, s69
    s_lshl_b32 s68, s{sJ}, 2
    s_load_dword s14, s[66:67], s68
    s_branch P1_C
    P1_HLP:""")
    if cfg.codewarm:
        A("s_getpc_b64 s[64:65]\ns_and_b32 s64, s64, 0xffffff00")
        srd(A, HK_, 64, 65, "CODE_END-CODE_BEG-1024")
    A(f"""s_and_b32 s58, s{sM}, 3
    s_lshl_b32 s58, s58, 3
    s_add_u32 s58, s58, s{sW}
    s_lshl_b32 s58, s58, 10""")
    for p in range(5): A(f"buffer_load_dwordx4 v[24:27], v2, {R(HK_ if cfg.codewarm else X_)}, s58 offen" if p == 0 else f"buffer_load_dword v24, v2, {R(HK_ if cfg.codewarm else X_)}, s58 offen")
    A("P1_C:")
    vm.issue(5)
    A(f"""s_load_dwordx4 s[4:7], s[0:1], 56
    s_load_dwordx4 s[8:11], s[0:1], 72
    s_load_dwordx2 s[64:65], s[0:1], 88""")
    A(f"""v_bfe_u32 v4, v1, 4, 1
    v_and_b32 v5, 3, v1
    v_lshl_add_u32 v4, v4, 2, v5
    v_mul_u32_u24 v20, 928, v4
    v_bfe_u32 v5, v1, 2, 2
    v_mul_u32_u24 v6, 112, v5
    v_lshrrev_b32 v8, 5, v1
    s_lshl_b32 s58, s{sW}, 1
    v_add_lshl_u32 v8, v8, s58, 3
    v_add3_u32 v20, v20, v6, v8
    v_bfe_u32 v4, v1, 4, 1
    v_lshl_add_u32 v4, v4, 2, v5
    v_lshrrev_b32 v8, 1, v8
    v_and_b32 v6, 3, v1
    v_add_u32 v8, v8, v6
    v_lshl_add_u32 v4, v8, 1, v4
    v_and_b32 v4, 7, v4
    v_lshlrev_b32 v4, 4, v4
    v_lshl_add_u32 v21, v8, 7, v4
    v_add_u32 v21, {OUT}, v21
    v_lshrrev_b32 v8, 3, v0
    v_and_b32 v5, 7, v0
    v_lshl_add_u32 v4, v8, 1, v5
    v_and_b32 v4, 7, v4
    v_lshlrev_b32 v4, 4, v4
    v_lshl_add_u32 v22, v8, 7, v4
    v_add_u32 v22, {OUT}, v22
    s_mul_i32 s58, s{sXG}, 56
    v_add_u32 v8, s58, v8
    v_lshrrev_b32 v4, 1, v8
    v_lshlrev_b32 v4, 14, v4
    v_and_b32 v8, 1, v8
    v_lshl_add_u32 v4, v8, 12, v4
    v_lshl_add_u32 v4, v5, 4, v4
    s_lshl_b32 s58, s{sM}, 7
    v_add_u32 v23, s58, v4
    s_mov_b32 s15, 0x3f803f80
    v_mov_b32 v28, 0
    v_mov_b32 v29, 0""")
    stamp(1)
    vm.wait(tXR)
    for i in range(4): A(f"v_dot2_f32_bf16 v28, v{16+i}, s15, v28\nv_dot2_f32_bf16 v29, v{16+i}, v{16+i}, v29")
    A("s_nop 2")
    for dpp in ("quad_perm:[1,0,3,2] row_mask:0xf", "quad_perm:[2,3,0,1] row_mask:0xf", "row_half_mirror row_mask:0xf", "row_mirror row_mask:0xf",
                "row_bcast:15 row_mask:0xa", "row_bcast:31 row_mask:0xc"):
        A(f"""v_add_f32_dpp v28, v28, v28 {dpp} bank_mask:0xf
        v_add_f32_dpp v29, v29, v29 {dpp} bank_mask:0xf
        s_nop 0""")
    A(f"""v_mul_f32 v28, {fhex(1/448)}, v28
    v_mul_f32 v29, {fhex(1/448)}, v29
    v_fma_f32 v29, -v28, v28, v29
    v_max_f32 v29, 0, v29
    v_add_f32 v29, {fhex(1e-5)}, v29
    v_rsq_f32 v16, v29
    s_waitcnt lgkmcnt(0)
    s_add_u32 s{sTAG}, s{sTAG}, {TAGK}
    v_mul_f32 v17, -v28, v16
    v_mov_b32 v18, s{sTAG}
    v_mov_b32 v19, s{sTAG}
    s_lshl_b32 s63, s63, 4
    s_add_u32 s63, s63, {WS_S}
    v_mov_b32 v6, 0
    s_mov_b32 exec_lo, 0
    s_mov_b32 exec_hi, 0x80000000
    buffer_store_dwordx4 v[16:19], v6, {R(WS_)}, s63 offen sc1
    s_mov_b64 exec, -1""")
    vm.issue()
    A("s_barrier")
    stamp(2)
    srd(A, W1_, 4, 5, D*F*2); srd(A, W2_, 8, 9, D*F*2); srd(A, O_, 64, 65, NBX)
    A(f"""s_cmp_eq_u32 s{sW}, 7
    s_cbranch_scc1 P1_SK1""")
    for i, off in enumerate((KT+448, KT+928, KT+928+448, VT, VT+448)):
        A(f"ds_read_b64_tr_b16 v[{32+2*i}:{33+2*i}], v20 offset:{off}")
    A(f"""ds_read_b64_tr_b16 v[44:45], v20 offset:{XT}
    ds_read_b64_tr_b16 v[46:47], v20 offset:{XT+448}
    s_mov_b32 s58, 0xffff0000
    v_lshlrev_b32 v48, 16, v10
    v_and_b32 v49, s58, v10
    v_lshlrev_b32 v50, 16, v11
    v_and_b32 v51, s58, v11
    s_waitcnt lgkmcnt(4)""")
    for i in range(-3, 8):
        src = 32 + (i+4)//2
        A(f"v_and_b32 v{55+i}, s58, v{src}" if (i+4) & 1 else f"v_lshlrev_b32 v{55+i}, 16, v{src}")
    A("s_waitcnt lgkmcnt(0)")
    A(f"ds_write_b128 v21, v[44:47] offset:7168")
    for t in range(8):
        A(f"""v_mul_f32 v{64+t}, v{55+t}, v48
        v_fmac_f32 v{64+t}, v{54+t}, v49
        v_fmac_f32 v{64+t}, v{53+t}, v50
        v_fmac_f32 v{64+t}, v{52+t}, v51""")
        A(f"v_and_b32 v72, s58, v{38+t//2}" if t & 1 else f"v_lshlrev_b32 v72, 16, v{38+t//2}")
        A(f"v_mul_f32 v{64+t}, v{64+t}, v72")
    for i in range(4): A(f"v_cvt_pk_bf16_f32 v{76+i}, v{71-2*i}, v{70-2*i}")
    A(f"""ds_write_b128 v21, v[76:79]
    s_waitcnt lgkmcnt(0)
    P1_SK1:
    s_barrier
    s_cmp_eq_u32 s{sW}, 7
    s_cbranch_scc1 P1_SK2
    ds_read_b128 v[32:35], v22
    ds_read_b128 v[36:39], v22 offset:7168
    s_mov_b32 s58, 8192
    s_waitcnt lgkmcnt(1)
    buffer_store_dwordx4 v[32:35], v23, {R(WS_)}, 0 offen {cfg.sc_t}
    s_waitcnt lgkmcnt(0)
    buffer_store_dwordx4 v[36:39], v23, {R(WS_)}, s58 offen {cfg.sc_t}
    P1_SK2:""")
    stamp(3)
    vm.waitall(True)
    A(f"""s_barrier
    s_lshl_b32 s61, s{sXG}, 7
    s_add_u32 s61, s61, {F_A}
    v_mov_b32 v18, s{sTAG}
    s_cmp_lg_u32 s{sW}, 0
    s_cbranch_scc1 P1_NF
    s_lshl_b32 s62, s{sM}, 2
    s_add_u32 s62, s62, s61
    s_mov_b64 exec, 1
    buffer_store_dword v18, v6, {R(WS_)}, s62 offen {cfg.sc_fa}
    s_mov_b64 exec, -1
    P1_NF:
    s_cmp_ge_u32 s{sM}, 28
    s_cbranch_scc1 HELPER""")
    A(f"""s_mov_b64 exec, 0xffff
    ds_write_b16 v13, v12 offset:{CA}
    s_mov_b64 exec, -1
    v_mov_b32 v8, 0
    v_mov_b32 v9, 0
    s_lshr_b32 s58, s{sW}, 2
    s_mul_i32 s58, s58, {XKS}
    v_lshl_add_u32 v7, v1, 3, s58
    s_mov_b32 exec_hi, 0x0fffffff
    ds_write_b64 v7, v[8:9] offset:{XK}
    s_mov_b64 exec, -1
    s_mul_i32 s{sRT}, s{sM}, 37
    s_lshr_b32 s{sRT}, s{sRT}, 8
    s_mul_i32 s{sFS}, s{sRT}, 7
    s_sub_u32 s{sFS}, s{sM}, s{sFS}
    s_lshr_b32 s69, s{sW}, 1
    s_add_u32 s69, s69, s{sRT}
    s_and_b32 s69, s69, 3
    s_lshl_b32 s58, s{sXG}, 2
    s_add_u32 s{sRT}, s{sRT}, s58""")
    A(f"""v_and_b32 v10, 15, v1
    v_lshrrev_b32 v11, 4, v1
    v_and_b32 v12, 3, v10
    v_mul_u32_u24 v12, {CAS}, v12
    v_and_b32 v13, 12, v10
    v_lshlrev_b32 v13, 1, v13
    v_lshl_add_u32 v13, v11, 4, v13
    s_bfe_u32 s58, s{sW}, 0x10001
    s_and_b32 s59, s{sW}, 1
    s_lshl_b32 s59, s59, 8
    s_mul_i32 s62, s58, {4*CAS}
    s_add_u32 s62, s62, s59
    v_add3_u32 v14, v12, v13, s62
    v_lshlrev_b32 v20, 5, v10
    v_lshlrev_b32 v16, 4, v11
    v_sub_u32 v20, v20, v16
    s_mul_i32 s62, s58, {XKS}
    s_add_u32 s62, s62, {XK+496-192}
    s_sub_u32 s62, s62, s59
    v_add_u32 v20, s62, v20""")
    A(f"""v_lshrrev_b32 v5, 2, v1
    v_mul_u32_u24 v5, 3584, v5
    v_and_b32 v6, 3, v1
    v_lshl_add_u32 v3, v6, 4, v5
    s_lshl_b32 s68, s{sFS}, 3
    s_add_u32 s68, s68, s{sW}
    s_lshl_b32 s58, s68, 6
    v_add_u32 v3, s58, v3
    v_bfe_u32 v5, v1, 2, 2
    v_lshrrev_b32 v12, 5, v1
    v_lshl_add_u32 v12, v12, 2, v5
    v_lshlrev_b32 v12, 6, v12
    v_bfe_u32 v5, v1, 4, 1
    v_lshl_add_u32 v12, v5, 5, v12
    v_lshl_add_u32 v12, v6, 3, v12
    s_mul_i32 s66, s{sW}, {NSL*1024}
    s_add_u32 s66, s66, {WST}
    v_add_u32 v12, s66, v12
    v_and_b32 v21, 31, v1
    v_lshlrev_b32 v22, 2, v21
    v_mov_b32 v16, 0
    s_cmp_lg_u32 s{sW}, 0
    s_cbranch_scc1 H1_W""")
    poll(22, "s61", "fa")
    A("H1_W:\ns_waitcnt lgkmcnt(0)\ns_barrier")
    stamp(4)
    A(f"""s_lshl_b32 s58, s{sJ}, 14
    s_lshl_b32 s59, s{sW}, 10
    s_add_u32 s58, s58, s59
    s_lshr_b32 s61, s{sW}, 2
    s_mul_i32 s61, s61, {XKS-4096}
    s_add_u32 s61, s61, s59
    s_add_u32 m0, s61, {XK+480}
    s_add_u32 s62, s58, 8192
    buffer_load_dwordx4 v2, {R(WS_)}, s58 offen sc1 lds
    s_add_u32 m0, s59, {XX}
    s_cmp_ge_u32 s{sW}, 4
    buffer_load_dwordx4 v2, {R(WS_)}, s62 offen sc1 lds
    s_cbranch_scc1 CONV_HI""")
    tKV = vm.issue(); tXX = vm.issue()
    def w1dma(it):
        if it % 7 == 0:
            A(f"""s_add_u32 s67, s69, {it//7}
            s_and_b32 s67, s67, 3
            s_mul_i32 s67, s67, {7*57344}""")
        else:
            A(f"s_add_u32 s67, s67, 57344")
        A(f"""s_add_u32 m0, s66, {(it % NSL)*1024}
        s_nop 0
        buffer_load_dwordx4 v3, {R(W1_)}, s67 offen lds""")
        return vm.issue()
    W1R = 144
    def w1ring(tk, lo, hi):
        pend = None
        for it in range(lo, hi):
            vm.wait(tk[it])
            r = W1R + 4*it; so = (it % NSL)*1024
            lg.issue(); A(f"ds_read_b64_tr_b16 v[{r}:{r+1}], v12 offset:{so}")
            t = lg.issue(); A(f"ds_read_b64_tr_b16 v[{r+2}:{r+3}], v12 offset:{so+512}")
            if pend is not None:
                pit, pt = pend
                lg.wait(pt)
                if pit + NSL < 28: tk[pit+NSL] = w1dma(pit+NSL)
                for i in range(4): A(f"v_dot2_f32_bf16 v16, v{W1R+4*pit+i}, s15, v16")
            pend = (it, t)
        if pend is not None:
            pit, pt = pend
            lg.wait(pt)
            if pit + NSL < 28: tk[pit+NSL] = w1dma(pit+NSL)
            for i in range(4): A(f"v_dot2_f32_bf16 v16, v{W1R+4*pit+i}, s15, v16")
    st0 = vm.state()
    tk_lo = {it: w1dma(it) for it in range(NSL)}
    vm.wait(tKV)
    A("s_barrier")
    stamp(5)
    acc = {c: 32+4*c for c in range(8)}
    conv_body(A, lg, list(range(8)), 14, 20, acc, [64+4*i for i in range(20)])
    A(f"""s_lshl_b32 s58, s{sW}, 13
    s_add_u32 s58, s58, {RED}
    v_add_u32 v17, s58, v2
    s_nop 4""")
    for c in range(8):
        lg.issue(); A(f"ds_write_b128 v17, v[{32+4*c}:{35+4*c}] offset:{1024*c}")
    vm.wait(tXX); lg.waitall()
    A("s_branch CONV_J")
    st_lo = vm.state()
    vm.restore(st0)
    A(f"""CONV_HI:
    s_and_b32 s58, s{sW}, 3
    s_lshl_b32 s58, s58, 13
    s_add_u32 s61, s58, {WS_S}
    s_add_u32 s62, s61, 4096""")
    for i in range(8):
        tS = vm.issue(); A(f"buffer_load_dwordx4 v[{32+4*i}:{35+4*i}], v2, {R(WS_)}, s{61 if i < 4 else 62} offen offset:{1024*(i&3)} sc1")
    tk_hi = {it: w1dma(it) for it in range(NSL)}
    vm.wait(tKV)
    A("s_barrier")
    vm.wait(tS)
    def scheck(lbl):
        A(f"v_cmp_ne_u32 vcc, s{sTAG}, v34")
        for i in range(1, 8):
            A(f"v_cmp_ne_u32 s[62:63], s{sTAG}, v{34+4*i}\ns_or_b64 vcc, vcc, s[62:63]")
        A(f"s_cmp_eq_u64 vcc, 0\ns_cbranch_scc1 {lbl}")
    scheck("S_OK")
    A("s_mov_b32 s60, 0\nS_RETRY:\ns_add_u32 s62, s61, 4096")
    for i in range(8):
        A(f"buffer_load_dwordx4 v[{32+4*i}:{35+4*i}], v2, {R(WS_)}, s{61 if i < 4 else 62} offen offset:{1024*(i&3)} sc1")
    A("s_waitcnt vmcnt(0)")
    scheck("S_OK")
    A(f"""s_add_u32 s60, s60, 1
    s_cmp_lt_u32 s60, {cfg.timeout}
    s_cbranch_scc1 S_RETRY
    S_OK:
    s_lshr_b32 s58, s58, 1
    s_add_u32 s58, s58, {SS}
    v_lshl_add_u32 v17, v1, 3, s58""")
    for i in range(8):
        lg.issue(); A(f"ds_write_b64 v17, v[{32+4*i}:{33+4*i}] offset:{512*i}")
    w1ring(tk_hi, 0, cfg.n47)
    lg.waitall()
    st_hi = vm.state()
    A("CONV_J:\ns_barrier")
    stamp(6)
    A(f"""s_lshr_b32 s58, s{sW}, 2
    s_and_b32 s59, s{sW}, 3
    s_lshl_b32 s61, s58, 14
    s_lshl_b32 s62, s59, 11
    s_add_u32 s61, s61, s62
    s_add_u32 s61, s61, {RED}
    v_add_u32 v17, s61, v2
    ds_read_b128 v[64:67], v17
    ds_read_b128 v[68:71], v17 offset:8192
    ds_read_b128 v[72:75], v17 offset:1024
    ds_read_b128 v[76:79], v17 offset:9216
    v_lshlrev_b32 v4, 5, v10
    v_lshl_add_u32 v4, v11, 3, v4
    s_lshl_b32 s59, s59, 10
    s_mul_i32 s61, s58, {XKS}
    s_add_u32 s61, s61, s59
    v_xor_b32 v5, 8, v4
    v_add_u32 v5, s61, v5
    s_lshl_b32 s61, s58, 12
    s_add_u32 s61, s61, s59
    v_add_u32 v6, s61, v4
    s_lshl_b32 s61, s59, 2
    v_lshl_add_u32 v7, v4, 2, s61
    ds_read_b64 v[80:81], v5 offset:{XK+480}
    ds_read_b64 v[82:83], v5 offset:{XK+480+512}
    ds_read_b64 v[84:85], v6 offset:{XX}
    ds_read_b64 v[86:87], v6 offset:{XX+512}
    ds_read_b128 v[88:91], v7 offset:{SS}
    ds_read_b128 v[92:95], v7 offset:{SS+16}
    ds_read_b128 v[96:99], v7 offset:{SS+2048}
    ds_read_b128 v[100:103], v7 offset:{SS+2048+16}
    s_lshl_b32 s61, s14, 16
    s_and_b32 s62, s14, 0xffff0000
    s_cmp_eq_u32 s58, 0
    s_cselect_b32 s61, s61, s62
    s_mov_b32 s62, 0xffff0000
    v_lshrrev_b32 v4, 2, v10
    v_and_b32 v5, 1, v11
    v_lshl_add_u32 v4, v5, 2, v4
    s_lshr_b32 s59, s59, 7
    v_add_u32 v4, s59, v4
    v_mul_u32_u24 v4, 57344, v4
    v_and_b32 v5, 3, v10
    v_lshlrev_b32 v5, 5, v5
    v_lshrrev_b32 v6, 1, v11
    v_lshl_add_u32 v5, v6, 4, v5
    v_add_u32 v4, v4, v5
    s_lshl_b32 s63, s{sJ}, 1
    s_add_u32 s63, s63, s58
    s_lshl_b32 s63, s63, 7
    s_add_u32 s63, s63, {WS_H}
    s_waitcnt lgkmcnt(0)""")
    def unp(dst, reg, hi): return f"v_and_b32 v{dst}, s62, v{reg}" if hi else f"v_lshlrev_b32 v{dst}, 16, v{reg}"
    for t in range(2):
        kv, xx, ac, ot, sr = 80+2*t, 84+2*t, 64+8*t, 68+8*t, 88+8*t
        src = {3: (kv, 0), 2: (kv, 1), 1: (kv+1, 0), 0: (kv+1, 1)}
        for r in range(4):
            A(f"v_add_f32 v{ac+r}, v{ac+r}, v{ot+r}")
            A(unp(104, *src[r])); A(unp(105, xx+(r>>1), r&1))
            A(f"v_fmac_f32 v{ac+r}, s61, v104")
            A(f"v_fma_f32 v106, v105, v{sr+2*r}, v{sr+2*r+1}")
            A(f"v_fma_f32 v{ac+r}, v{ac+r}, v106, v105")
        A(f"v_cvt_pk_bf16_f32 v{108+2*t}, v{ac}, v{ac+1}\nv_cvt_pk_bf16_f32 v{109+2*t}, v{ac+2}, v{ac+3}")
    A(f"""s_nop 1
    v_permlane16_swap_b32 v108, v110
    v_permlane16_swap_b32 v109, v111
    buffer_store_dwordx4 v[108:111], v4, {R(WS_)}, s63 offen sc1
    s_waitcnt vmcnt(0)
    s_barrier""")
    stamp(7)
    A(f"""s_cmp_lg_u32 s{sW}, 7
    s_cbranch_scc1 H2_NF
    v_lshlrev_b32 v4, 14, v1
    s_lshl_b32 s58, s{sJ}, 6
    s_add_u32 s58, s58, {F_2}
    s_mov_b64 exec, 0xff
    buffer_store_dword v18, v4, {R(WS_)}, s58 offen sc1
    s_mov_b64 exec, -1
    H2_NF:""")
    dma_swz(A, 13, 1, 4, 5, 896)
    A(f"""s_lshl_b32 s58, s{sFS}, 7
    v_add_u32 v13, s58, v13
    s_cmp_ge_u32 s{sW}, 4
    s_cbranch_scc1 RING_HI""")
    vm.restore((st_lo[0], st_lo[0])); w1ring(tk_lo, 0, 28)
    A("s_branch RING_J\nRING_HI:")
    assert vm.issued == vm.done
    vm.restore((st_hi[0], st_hi[0]))
    w1ring(tk_hi, cfg.n47, 28)
    assert vm.issued == vm.done
    A("RING_J:")
    tr_pattern(A, 4, 5, 1, 6, 7, 8)
    A(f"""v_add_u32 v7, s66, v4
    v_add_u32 v8, s66, v5
    s_mul_i32 s67, s{sW}, {224*896}""")
    W2A, W2Bq, NA = 80, 144, 8
    def w2reg(ks): return W2A + 8*ks if ks < NA else W2Bq + 8*(ks-NA)
    def w2dma(base, off):
        A(f"""s_add_u32 m0, {base}, {off}
        s_add_u32 s59, s67, {8*896}
        buffer_load_dwordx4 v13, {R(W2_)}, s67 offen lds
        s_add_u32 m0, {base}, {off+1024}
        s_add_u32 s67, s67, {16*896}
        buffer_load_dwordx4 v13, {R(W2_)}, s59 offen lds""")
        vm.issue(); return vm.issue()
    def w2tr(ks, off):
        r = w2reg(ks); t = None
        for dt in range(2):
            for j in range(2):
                t = lg.issue(); A(f"ds_read_b64_tr_b16 v[{r+4*dt+2*j}:{r+4*dt+2*j+1}], v{7+dt} offset:{off+1024*j}")
        return t
    tk = {ks: w2dma("s66", 2048*ks) for ks in range(3)}
    srd(A, SM_, 6, 7, F*2)
    A(f"""s_lshl_b32 s58, s68, 6
    v_lshl_add_u32 v6, v21, 1, s58
    buffer_load_ushort v17, v6, {R(SM_)}, 0 offen
    v_mov_b32 v19, v16
    s_lshl_b32 s58, s{sW}, 8
    s_add_u32 s58, s58, {CS}
    v_permlane32_swap_b32 v16, v19
    v_add_u32 v6, s58, v22
    v_lshrrev_b32 v9, 5, v1
    v_add_f32 v16, v16, v19
    v_lshl_add_u32 v9, v9, 4, s58
    ds_write_b32 v6, v16""")
    tb1 = vm.issue(); lg.issue()
    pend = None
    for ks in range(NA):
        vm.wait(tk[ks])
        t = w2tr(ks, 2048*(ks % 3))
        if pend is not None:
            lg.wait(pend[1])
            if pend[0]+3 < NA: tk[pend[0]+3] = w2dma("s66", 2048*(pend[0] % 3))
        pend = (ks, t)
        if ks == 1:
            vm.wait(tb1)
            A("v_lshlrev_b32 v17, 16, v17"); lg.issue(); A("ds_write_b32 v6, v17 offset:128")
    lg.waitall(); assert vm.issued == vm.done
    dma_swz(A, 14, 1, 6, 15, 128)
    A(f"""s_lshl_b32 s61, s{sXG}, 7
    s_add_u32 s61, s61, {F_GO}
    v_mov_b32 v6, 0
    s_cmp_lg_u32 s{sW}, 7
    s_cbranch_scc1 H2_W""")
    stamp(8)
    poll(6, "s61", "go")
    A("H2_W:\ns_barrier")
    stamp(9)
    A(f"""s_mul_i32 s58, s{sRT}, 57344
    s_mul_i32 s61, s{sW}, 7168
    s_add_u32 s58, s58, s61
    s_add_u32 s58, s58, {WS_H}
    s_add_u32 m0, s61, {HT}
    s_add_u32 s62, s58, 4096""")
    for i in range(4): A(f"buffer_load_dwordx4 v14, {R(WS_)}, s58 offen offset:{1024*i} sc1 lds")
    A(f"s_add_u32 m0, s61, {HT+4096}\ns_mul_i32 s66, s{sW}, 12288")
    for i in range(3): A(f"buffer_load_dwordx4 v14, {R(WS_)}, s62 offen offset:{1024*i} sc1 lds")
    tHT = vm.issue(7)
    A(f"s_add_u32 s66, s66, {W2B}")
    tk2 = {ks: w2dma("s66", 2048*(ks-NA)) for ks in range(NA, 14)}
    A(f"""v_add_u32 v7, s66, v4
    v_add_u32 v8, s66, v5
    s_mul_i32 s58, s69, {7*2048}
    v_add_u32 v4, s58, v4
    v_add_u32 v5, s58, v5
    s_and_b32 s59, s{sW}, 1
    s_lshl_b32 s59, s59, 6
    v_xor_b32 v6, s59, v4
    s_mov_b32 s62, 0xffff0000
    v_mov_b32 v10, 0
    v_mov_b32 v11, 0
    v_mov_b32 v12, 0
    v_mov_b32 v13, 0""")
    vm.wait(tHT)
    A("s_barrier")
    stamp(10)
    ACC0, ACC1 = 32, 48
    BB = [64, 68, 72, 76]
    def segadv(regs, it):
        A(f"""s_add_u32 s60, s69, {it//7}
        s_and_b32 s60, s60, 3
        s_cselect_b32 s60, 1, -3
        s_mul_i32 s60, s60, {7*2048}""")
        for r in regs: A(f"v_add_u32 v{r}, s60, v{r}")
    def bread(it, areg, dst):
        bo = HT + (it % 7)*2048
        lg.issue(); A(f"ds_read_b64_tr_b16 v[{dst}:{dst+1}], v{areg} offset:{bo}")
        t = lg.issue(); A(f"ds_read_b64_tr_b16 v[{dst+2}:{dst+3}], v{areg} offset:{bo+1024}")
        return t
    PF = 2
    SB = [48, 52]
    tB = {}; tSt = {}
    def issueA(it):
        if it % 7 == 0 and it > 0: segadv([4, 6], it)
        tB[it] = bread(it, 4, BB[it % 4])
        if it % 4 == 0: tSt[it] = bread(it, 6, SB[(it//4) & 1])
    for it in range(PF): issueA(it)
    for it in range(28):
        if it + PF < 28: issueA(it + PF)
        lg.wait(tB[it])
        A(f"v_mfma_f32_32x32x16_bf16 {v(ACC0,16)}, {v(W1R+4*it,4)}, {v(BB[it%4],4)}, {v(ACC0,16) if it else '0'}")
        lg.wait(tSt[it - it % 4])
        r = SB[(it//4) & 1] + it % 4
        A(f"""v_lshlrev_b32 v24, 16, v{r}
        v_and_b32 v25, s62, v{r}
        v_add_f32 v10, v10, v24
        v_fmac_f32 v11, v24, v24
        v_add_f32 v12, v12, v25
        v_fmac_f32 v13, v25, v25""")
    def gelu_ops(acc, r, n, tset):
        ops = []
        toks = {}
        def rd(g):
            def f():
                lg.issue(); A(f"ds_read_b128 v[16:19], v9 offset:{32*g}")
                toks[g] = lg.issue(); A(f"ds_read_b128 v[20:23], v9 offset:{128+32*g}")
            return f
        ops.append(rd(0))
        for g in range(4):
            T = 24 + 4*(g & 1); a = acc + 4*g
            ops.append(lambda g=g: lg.wait(toks[g]))
            for i in range(4): ops.append(f"v_fma_f32 v{T+i}, v{n}, v{16+i}, v{20+i}")
            if g < 3: ops.append(rd(g+1))
            for i in range(4): ops.append(f"v_fma_f32 v{a+i}, v{a+i}, v{r}, v{T+i}")
            for i in range(4): ops.append(f"v_mul_f32 v{T+i}, v{a+i}, v{a+i}")
            for i in range(4): ops.append(f"v_fma_f32 v{T+i}, v{T+i}, s63, v15")
            for i in range(4): ops.append(f"v_mul_f32 v{T+i}, v{T+i}, v{a+i}")
            for i in range(4): ops.append(f"v_exp_f32 v{T+i}, v{T+i}")
            for i in range(4): ops.append(f"v_add_f32 v{T+i}, 1.0, v{T+i}")
            for i in range(4): ops.append(f"v_rcp_f32 v{T+i}, v{T+i}")
            for i in range(4): ops.append(f"v_mul_f32 v{a+i}, v{a+i}, v{T+i}")
            o = acc + 8*(g >> 1) + 2*(g & 1)
            ops.append(f"v_cvt_pk_bf16_f32 v{o}, v{a}, v{a+1}")
            ops.append(f"v_cvt_pk_bf16_f32 v{o+1}, v{a+2}, v{a+3}")
            if g & 1:
                def st(g=g, o=o):
                    tset.append(vm.issue()); A(f"buffer_store_dwordx4 v[{o-2}:{o+1}], v2, {R(WS_)}, s61 offen offset:{2048*(g>>1)} {cfg.sc_hid}")
                ops.append(st)
        return ops
    def cost(op):
        if callable(op): return 0
        return 2 if op.startswith(("v_exp", "v_rcp", "v_rsq")) else 1
    def run(op):
        if callable(op): op()
        else: A(op)
    pre = []
    pre += ["v_add_f32 v10, v10, v12", "v_add_f32 v11, v11, v13", "s_nop 0", "v_mov_b32 v12, v10", "v_mov_b32 v13, v11",
            f"s_and_b32 s58, s{sW}, 1", "s_lshl_b32 s58, s58, 10", f"s_lshr_b32 s59, s{sW}, 1", "s_lshl_b32 s59, s59, 8",
            "v_permlane32_swap_b32 v10, v12", "v_permlane32_swap_b32 v11, v13",
            "s_add_u32 s58, s58, s59", f"s_add_u32 s58, s58, {ST}",
            "v_add_f32 v10, v10, v12", "v_add_f32 v11, v11, v13", "v_lshl_add_u32 v24, v22, 1, s58"]
    hold = {}
    def wr():
        hold["w"] = lg.issue(); A("ds_write_b64 v24, v[10:11]")
    def bar2():
        lg.wait(hold["w"]); A("s_barrier")
        A(f"v_lshlrev_b32 v14, 1, v22\nv_add_u32 v14, {ST}, v14")
        for t in range(2):
            for q in range(4):
                hold[t] = lg.issue(); A(f"ds_read_b64 v[{16+8*t+2*q}:{17+8*t+2*q}], v14 offset:{1024*t+256*q}")
    fin = []
    for t in range(2):
        b = 16+8*t; r, n = 10+2*t, 11+2*t
        fin.append(lambda t=t: lg.wait(hold[t]))
        fin += [f"v_add_f32 v{b}, v{b}, v{b+2}", f"v_add_f32 v{b+1}, v{b+1}, v{b+3}", f"v_add_f32 v{b+4}, v{b+4}, v{b+6}", f"v_add_f32 v{b+5}, v{b+5}, v{b+7}",
                f"v_add_f32 v{b}, v{b}, v{b+4}", f"v_add_f32 v{b+1}, v{b+1}, v{b+5}",
                f"v_mul_f32 v{b}, {fhex(1/448)}, v{b}", f"v_mul_f32 v{b+1}, {fhex(1/448)}, v{b+1}",
                f"v_fma_f32 v{b+1}, -v{b}, v{b}, v{b+1}", f"v_max_f32 v{b+1}, 0, v{b+1}", f"v_add_f32 v{b+2}, {fhex(1e-5)}, v{b+1}",
                f"v_rsq_f32 v{b+2}, v{b+2}", "s_nop 0", f"v_mul_f32 v{b+3}, v{b+2}, v{b+2}", f"v_mul_f32 v{b+3}, v{b+3}, v{b+1}",
                f"v_add_f32 v{b+3}, {fhex(1e-5)}, v{b+3}", f"v_rsq_f32 v{b+3}, v{b+3}", "s_nop 0",
                f"v_mul_f32 v{r}, v{b+2}, v{b+3}", f"v_mul_f32 v{n}, -v{b}, v{r}"]
    setup = [f"s_mov_b32 s63, {fhex(GC2)}", f"v_mov_b32 v15, {fhex(GC1)}",
             f"s_mul_i32 s61, s{sRT}, 229376", "s_lshl_b32 s58, s68, 12", "s_add_u32 s61, s61, s58", f"s_add_u32 s61, s61, {WS_HID}"]
    st0t = []
    fill = pre + [wr, bar2] + fin + setup + gelu_ops(ACC0, 10, 11, st0t)
    tot = sum(cost(o) for o in fill)
    tB = {}
    for it in range(PF):
        tB[it] = bread(it, 5, BB[it % 4])
    fi = 0; spent = 0
    for it in range(28):
        if it + PF < 28:
            if (it+PF) % 7 == 0: segadv([5], it+PF)
            tB[it+PF] = bread(it+PF, 5, BB[(it+PF) % 4])
        lg.wait(tB[it])
        A(f"v_mfma_f32_32x32x16_bf16 {v(ACC1,16)}, {v(W1R+4*it,4)}, {v(BB[it%4],4)}, {v(ACC1,16) if it else '0'}")
        target = tot*(it+1)/26
        while fi < len(fill) and spent < target:
            run(fill[fi]); spent += cost(fill[fi]); fi += 1
        if it >= 14 and it % 2 == 0 and NA + (it-14)//2 < 14:
            ks = NA + (it-14)//2
            vm.wait(tk2[ks]); w2tr(ks, 2048*(ks-NA))
    assert fi == len(fill)
    A(f"""s_lshl_b32 s58, s{sRT}, 9
    s_add_u32 s67, s58, {F_3}
    s_lshl_b32 s65, s68, 2
    s_add_u32 s65, s65, s67
    s_add_u32 s66, s65, 256
    s_add_u32 s61, s61, 1024
    s_mul_i32 s59, s{sW}, 28
    v_lshl_add_u32 v6, v1, 2, s59
    s_mul_i32 s64, s{sRT}, 229376
    s_mul_i32 s59, s{sW}, {14*2048}
    s_add_u32 s64, s64, s59
    s_add_u32 s64, s64, {WS_HID}
    v_mov_b32 v4, 0
    v_mov_b32 v5, s{sTAG}""")
    lg.waitall()
    stamp(11)
    def flag3(sreg):
        A(f"""s_mov_b64 exec, 1
        buffer_store_dword v5, v4, {R(WS_)}, {sreg} offen {cfg.sc_f3}
        s_mov_b64 exec, -1""")
        vm.issue()
    BL = [192+4*i for i in range(16)]
    tH = {}
    def hload(t, ks):
        n = 14*t + ks; r = BL[n % 16]
        A(f"s_add_u32 s59, s64, {2048*ks + 1024*t}")
        tH[n] = vm.issue(); A(f"buffer_load_dwordx4 v[{r}:{r+3}], v2, {R(WS_)}, s59 offen sc1")
    st1t = []
    g1 = gelu_ops(ACC1, 12, 13, st1t)
    half = [i for i, o in enumerate(g1) if callable(o) and o.__name__ == "st"][0]
    fpos = int(half*cfg.f0pos)
    for o in g1[:fpos]: run(o)
    vm.wait(st0t[-1]); flag3("s65")
    for o in g1[fpos:half]: run(o)
    if cfg.nb0 > 0:
        vm.waitall()
        poll(6, "s67", "f3", mask="s_mov_b64 exec, 0x7f", vdat=14)
        for ks in range(cfg.nb0): hload(0, ks)
        for o in g1[half:]: run(o)
        for ks in range(cfg.nb0, 14): hload(0, ks)
        vm.wait(st1t[-1]); flag3("s66")
    else:
        for o in g1[half:]: run(o)
        vm.waitall(); flag3("s66")
        poll(6, "s67", "f3", mask="s_mov_b64 exec, 0x7f", vdat=14)
        for ks in range(14): hload(0, ks)
    A("s_add_u32 s67, s67, 256")
    stamp(12)
    G2A = {(0, 0): 32, (1, 0): 64, (0, 1): 48, (1, 1): 16}
    for ks in range(14):
        vm.wait(tH[ks])
        for dt in range(2):
            a = G2A[dt, 0]
            A(f"v_mfma_f32_32x32x16_bf16 {v(a,16)}, {v(w2reg(ks)+4*dt,4)}, {v(BL[ks%16],4)}, {v(a,16) if ks else '0'}")
    vm.waitall()
    poll(6, "s67", "f3b", mask="s_mov_b64 exec, 0x7f", vdat=14)
    for ks in range(14): hload(1, ks)
    A(f"""v_and_b32 v7, 7, v1
    v_and_b32 v5, 31, v1
    v_lshlrev_b32 v5, 7, v5
    v_lshrrev_b32 v6, 5, v1
    v_lshl_add_u32 v5, v6, 3, v5
    s_lshl_b32 s58, s{sW}, 13
    s_add_u32 s58, s58, {PP}
    v_add_u32 v9, s58, v5""")
    tr_pattern(A, 10, 11, 1, 12, 13, 14)
    A(f"""s_lshr_b32 s58, s{sW}, 2
    s_bfe_u32 s59, s{sW}, 0x10001
    s_and_b32 s61, s{sW}, 1
    s_lshl_b32 s61, s61, 1
    s_lshl_b32 s58, s58, 2
    s_add_u32 s58, s58, s61
    s_lshl_b32 s61, s{sFS}, 3
    s_add_u32 s61, s61, s58
    s_lshl_b32 s61, s61, 10
    s_lshl_b32 s62, s59, 6
    v_xor_b32 v10, s62, v10
    v_add_u32 v10, s61, v10
    ds_read_b64_tr_b16 v[12:13], v10 offset:{HT}
    ds_read_b64_tr_b16 v[14:15], v10 offset:{HT+1024}
    s_lshl_b32 s59, s59, 12
    s_add_u32 s59, s59, {PP+8*8192}
    v_add_u32 v5, s59, v5
    v_xor_b32 v6, s58, v7
    v_lshl_add_u32 v11, v6, 4, v5
    v_xor_b32 v8, 16, v11""")
    srd(A, SM_, 10, 11, D*2)
    for ks in range(14):
        vm.wait(tH[14+ks])
        for dt in range(2):
            a = G2A[dt, 1]
            A(f"v_mfma_f32_32x32x16_bf16 {v(a,16)}, {v(w2reg(ks)+4*dt,4)}, {v(BL[(14+ks)%16],4)}, {v(a,16) if ks else '0'}")
    A(f"""s_lshl_b32 s62, s{sFS}, 7
    v_lshl_add_u32 v4, v7, 4, s62
    buffer_load_dwordx4 v[80:83], v4, {R(SM_)}, 0 offen
    s_waitcnt lgkmcnt(0)
    s_barrier""")
    stamp(13)
    A(f"""ds_write_b64 v11, v[12:13]
    ds_write_b64 v8, v[14:15]""")
    for pc in range(8):
        A(f"v_xor_b32 v6, {pc}, v7\nv_lshl_add_u32 v{84+pc}, v6, 4, v9")
    n = 0
    for rt in range(2):
        for dt in range(2):
            for a in range(4):
                r = G2A[dt, rt]+4*a; o = 96+2*n; n += 1
                A(f"""v_cvt_pk_bf16_f32 v{o}, v{r}, v{r+1}
                v_cvt_pk_bf16_f32 v{o+1}, v{r+2}, v{r+3}
                ds_write_b64 v{84+4*dt+a}, v[{o}:{o+1}] offset:{4096*rt}""")
                if n == 8: A("s_waitcnt lgkmcnt(4)")
    A(f"""v_lshrrev_b32 v5, 3, v0
    v_and_b32 v6, 7, v5
    v_xor_b32 v6, v6, v7
    v_lshlrev_b32 v10, 7, v5
    v_lshl_add_u32 v10, v6, 4, v10
    v_add_u32 v10, {PP}, v10
    v_add_u32 v11, 32768, v10
    s_waitcnt lgkmcnt(0)
    s_barrier""")
    for i in range(9):
        A(f"ds_read_b128 v[{32+4*i}:{35+4*i}], v{10 if i < 4 else 11} offset:{8192*(i if i < 4 else i-4)}")
    A(f"""s_lshl_b32 s58, s{sRT}, 6
    v_add_u32 v5, s58, v5
    v_mul_u32_u24 v5, 896, v5
    v_add_u32 v5, v5, v4
    s_mov_b32 s59, 0xffff0000
    s_mov_b32 s60, 0x3f80
    s_mov_b32 s61, 0x3f800000
    s_waitcnt vmcnt(0)""")
    for i in range(4):
        A(f"v_lshlrev_b32 v{72+2*i}, 16, v{80+i}\nv_and_b32 v{73+2*i}, s59, v{80+i}")
    for i in range(9):
        A(f"s_waitcnt lgkmcnt({8-i})")
        for d in range(4):
            A(f"v_dot2_f32_bf16 v{72+2*d}, v{32+4*i+d}, s60, v{72+2*d}\nv_dot2_f32_bf16 v{73+2*d}, v{32+4*i+d}, s61, v{73+2*d}")
    A("s_nop 2")
    for d in range(4): A(f"v_cvt_pk_bf16_f32 v{84+d}, v{72+2*d}, v{73+2*d}")
    A(f"buffer_store_dwordx4 v[84:87], v5, {R(O_)}, 0 offen")
    if cfg.stamp:
        A("""s_waitcnt vmcnt(0)
        s_memrealtime s[98:99]
        s_memtime s[58:59]
        s_waitcnt lgkmcnt(0)
        s_sub_u32 s58, s58, s100
        v_mov_b32 v19, s58""")
        for i in range(15): A(f"v_mov_b32 v{4+i}, s{70+2*i}")
        A(f"""s_lshl_b32 s58, s2, 3
        s_add_u32 s58, s58, s{sW}
        s_lshl_b32 s58, s58, 6
        s_add_u32 s58, s58, {WS_STAMP}
        v_mov_b32 v2, 0
        s_mov_b64 exec, 1""")
        for i in range(4): A(f"buffer_store_dwordx4 v[{4+4*i}:{7+4*i}], v2, {R(WS_)}, s58 offen offset:{16*i}")
    A("s_endpgm")
    A(f"""HELPER:
    s_cmp_eq_u32 s{sM}, 28
    s_cbranch_scc1 LEADER
    s_sub_u32 s58, s{sM}, 29
    s_lshl_b32 s58, s58, 3
    s_add_u32 s58, s58, s{sW}
    s_mul_i32 s58, s58, {66*1024}
    s_mov_b32 s59, 0
    HSTREAM:""")
    for i in range(11):
        A(f"buffer_load_dwordx4 v[24:27], v2, {R(W2_)}, s58 offen\ns_add_u32 s58, s58, 1024")
    A(f"""s_waitcnt vmcnt(11)
    s_add_u32 s59, s59, 1
    s_cmp_lt_u32 s59, 6
    s_cbranch_scc1 HSTREAM
    s_waitcnt vmcnt(0)
    s_endpgm
    LEADER:
    s_cmp_lg_u32 s{sW}, 0
    s_cbranch_scc1 END
    v_lshlrev_b32 v4, 6, v1
    s_lshl_b32 s58, s{sXG}, 14
    s_add_u32 s58, s58, {F_2}
    s_add_u32 s59, s58, {56*64}
    s_add_u32 s61, s58, {2*56*64}
    s_add_u32 s62, s58, {3*56*64}
    s_mov_b32 s60, 0
    s_mov_b32 exec_hi, 0x00ffffff
    LPOLL:
    buffer_load_dword v24, v4, {R(WS_)}, s58 offen sc1
    buffer_load_dword v25, v4, {R(WS_)}, s59 offen sc1
    buffer_load_dword v26, v4, {R(WS_)}, s61 offen sc1
    buffer_load_dword v27, v4, {R(WS_)}, s62 offen sc1
    s_waitcnt vmcnt(0)
    v_cmp_ne_u32 vcc, s{sTAG}, v24
    v_cmp_ne_u32 s[64:65], s{sTAG}, v25
    s_or_b64 vcc, vcc, s[64:65]
    v_cmp_ne_u32 s[64:65], s{sTAG}, v26
    s_or_b64 vcc, vcc, s[64:65]
    v_cmp_ne_u32 s[64:65], s{sTAG}, v27
    s_or_b64 vcc, vcc, s[64:65]
    s_cmp_eq_u64 vcc, 0
    s_cbranch_scc1 LGO
    s_add_u32 s60, s60, 1
    s_cmp_lt_u32 s60, {cfg.timeout}
    s_cbranch_scc1 LPOLL
    LGO:
    s_lshl_b32 s58, s{sXG}, 7
    s_add_u32 s58, s58, {F_GO}
    s_mov_b64 exec, 1
    buffer_store_dword v18, v6, {R(WS_)}, s58 offen {cfg.sc_go}
    s_cmp_lg_u32 s{sXG}, 0
    s_cbranch_scc1 END
    s_mov_b32 s58, {F_EP}
    buffer_store_dword v18, v6, {R(WS_)}, s58 offen sc1
    END:
    s_endpgm""")
    return A.text()

def build(cfg):
    hdr = open("sequential_preLN__ssm_conv_h3__mixer_channel_mlp__prompt.s.ref").read().split("; Override launch")[0]
    out = hdr + f"; @launch grid=(256,1,1) block=(512,1,1) lds={LDS_BYTES}\n"
    out += '.amdgcn_target "amdgcn-amd-amdhsa--gfx950"\n'
    out += kernel_header(NAME) + "CODE_BEG:\n" + gen(cfg) + "CODE_END:\n" + kernel_desc(NAME, 256)
    return out

if __name__ == "__main__":
    cfg = Cfg()
    path = sys.argv[1]
    for a in sys.argv[2:]:
        k, val = a.split("=")
        old = getattr(cfg, k)
        setattr(cfg, k, (val == "1") if isinstance(old, bool) else type(old)(val))
    open(path, "w").write(build(cfg))
```

```python
import sys
from asmlib import *

S, D, F = 2048, 448, 1792
NBX = S*D*2
WS_T, WS_H, WS_HID, WS_S, WS_F = 0, 0x400000, 0x600000, 0xD00000, 0xD10000
F_EP, F_A, F_2, F_GO, F_3, F_XW = WS_F, WS_F+0x1000, WS_F+0x2000, WS_F+0x24000, WS_F+0x28000, WS_F+0x30000
WS_STAMP = 0xE00000
WS_BYTES = 0x1000000
TAGK = 0x9E3779B9
CA, CAS = 0, 4160
XK, XKS = 33280, 4608
XX, SS, RED, WST = 42496, 50688, 67072, 99840
KT, VT, XT, OUT = 42496, 42496+8352, 42496+8352+7424, 42496+23296
NSL = 7
MISC = 157184
ST, CS = MISC+0, MISC+2048
HT, W2B, PP = 0, 57344, 57344
LDS_BYTES = 163840
GC1 = -2.0*0.7978845608028654*1.4426950408889634
GC2 = GC1*0.044715
NAME = "sequential_preLN__ssm_conv_h3__mixer_channel_mlp__prompt_kernel"

class Cfg:
    stamp = False
    sc_t = "sc1"
    sc_fa = "sc1"
    sc_go = "sc1"
    sc_hid = "sc1"
    sc_f3 = "sc1"
    n47 = 7
    nb0 = 6
    timeout = 200000
    dbgwg = -1
    f0pos = 0.5
    codewarm = True

sTAG = 3
K_, V_, X_, WS_, HK_, W1_, W2_, SM_, O_ = 16, 20, 24, 28, 32, 36, 40, 44, 48
sXG, sM, sW, sJ, sRT, sFS = 52, 53, 54, 55, 56, 57

def srd(A, r, lo, hi, nbytes):
    A(f"""s_mov_b32 s{r}, s{lo}
    s_and_b32 s{r+1}, s{hi}, 0xffff
    s_mov_b32 s{r+2}, {nbytes}
    s_mov_b32 s{r+3}, 0x20000""")
def R(r): return f"s[{r}:{r+3}]"

def tr_pattern(A, dst0, dst1, lane, t0, t1, t2):
    A(f"""v_and_b32 v{t0}, 3, v{lane}
    v_bfe_u32 v{t1}, v{lane}, 2, 2
    v_lshrrev_b32 v{t2}, 5, v{lane}
    v_lshl_add_u32 v{t2}, v{t2}, 2, v{t1}
    v_lshlrev_b32 v{dst0}, 7, v{t2}
    v_lshrrev_b32 v{t1}, 1, v{t1}
    v_lshlrev_b32 v{t1}, 6, v{t1}
    v_add_u32 v{dst0}, v{dst0}, v{t1}
    v_bfe_u32 v{t1}, v{lane}, 4, 1
    v_lshl_add_u32 v{dst0}, v{t1}, 5, v{dst0}
    v_lshl_add_u32 v{dst0}, v{t0}, 3, v{dst0}
    v_xor_b32 v{dst1}, 64, v{dst0}""")

def dma_swz(A, dst, lane, t0, t1, rowstride):
    A(f"""v_lshrrev_b32 v{t0}, 3, v{lane}
    v_mul_u32_u24 v{t0}, {rowstride}, v{t0}
    v_and_b32 v{t1}, 7, v{lane}
    v_lshlrev_b32 v{t1}, 4, v{t1}
    v_bfe_u32 v{dst}, v{lane}, 4, 1
    v_lshlrev_b32 v{dst}, 6, v{dst}
    v_xor_b32 v{t1}, v{t1}, v{dst}
    v_add_u32 v{dst}, v{t0}, v{t1}""")

def conv_body(A, lg, cset, vA, vB, acc, pool, lookahead=13):
    mf = []
    for i in range(4):
        prs = [(vv, c-vv, c) for c in cset for vv in range(c+1)]
        prs.sort(key=lambda t: (max(t[0], t[1]), t[2], t[0]))
        for vv, e, c in prs: mf.append((("A", i, vv), ("B", i, e), c))
    order = []
    for a, b, c in mf:
        for x in (a, b):
            if x not in order: order.append(x)
    last = {}
    for n, (a, b, c) in enumerate(mf): last[a] = n; last[b] = n
    free = list(pool); reg = {}; tok = {}; nxt = 0; first = set()
    def issue(x):
        r = free.pop(0); reg[x] = r
        k, i, z = x
        if k == "A":
            lg.issue(); A(f"ds_read_b64 v[{r}:{r+1}], v{vA} offset:{64*i+512*z}")
            tok[x] = lg.issue(); A(f"ds_read_b64 v[{r+2}:{r+3}], v{vA} offset:{64*i+512*z+8}")
        else:
            tok[x] = lg.issue(); A(f"ds_read_b128 v[{r}:{r+3}], v{vB} offset:{512*z+64*(3-i)}")
    for n, (a, b, c) in enumerate(mf):
        while a not in reg or b not in reg:
            issue(order[nxt]); nxt += 1
        k = 0
        while nxt < len(order) and free and lg.issued - lg.done + 2 <= lookahead and (k < 1 or n < 4):
            issue(order[nxt]); nxt += 1; k += 1
        lg.wait(max(tok[a], tok[b]))
        cin = v(acc[c], 4) if c in first else "0"
        first.add(c)
        A(f"v_mfma_f32_16x16x32_bf16 {v(acc[c],4)}, {v(reg[a],4)}, {v(reg[b],4)}, {cin}")
        for x in (a, b):
            if last[x] == n: free.append(reg[x])

def gen(cfg):
    A = Asm(); vm = Cnt(A, "vmcnt", 63); lg = Cnt(A, "lgkmcnt", 15)
    def stamp(n):
        if cfg.stamp:
            assert lg.issued == lg.done
            A(f"s_memrealtime s[{70+2*n}:{71+2*n}]\ns_waitcnt lgkmcnt(0)")
    def poll(voff, soff, nm, mask=None, vdat=15):
        L = A.label("POLL"); Dn = A.label("POLLD")
        assert vm.issued >= vm.done
        A(f"s_mov_b32 s60, 0")
        if mask: A(mask)
        A(f"""{L}:
        buffer_load_dword v{vdat}, v{voff}, {R(WS_)}, {soff} offen sc1
        s_waitcnt vmcnt(0)
        v_cmp_ne_u32 vcc, s{sTAG}, v{vdat}
        s_cmp_eq_u64 vcc, 0
        s_cbranch_scc1 {Dn}
        s_add_u32 s60, s60, 1
        s_cmp_lt_u32 s60, {cfg.timeout}
        s_cbranch_scc1 {L}
        {Dn}:""")
        if mask: A("s_mov_b64 exec, -1")
    A(f"""s_cmp_ge_u32 s2, 256
    s_cbranch_scc1 END
    s_load_dwordx4 s[4:7], s[0:1], 0
    s_load_dwordx4 s[8:11], s[0:1], 16
    s_load_dwordx2 s[12:13], s[0:1], 104
    s_load_dwordx4 s[64:67], s[0:1], 32""")
    if cfg.stamp:
        A("s_memrealtime s[70:71]\ns_memtime s[100:101]")
        for i in range(1, 14): A(f"s_mov_b32 s{70+2*i}, 0")
    A(f"""s_and_b32 s{sXG}, s2, 7
    s_lshr_b32 s{sM}, s2, 3
    v_and_b32 v1, 63, v0
    v_lshrrev_b32 v4, 6, v0
    v_mul_u32_u24 v5, 37, v1
    v_readfirstlane_b32 s{sW}, v4
    v_lshrrev_b32 v5, 8, v5
    v_mul_u32_u24 v6, 7, v5
    v_sub_u32 v6, v1, v6
    v_mul_u32_u24 v3, 896, v5
    v_lshl_add_u32 v3, v6, 4, v3
    s_mul_i32 s58, s{sM}, {64*896}
    s_mul_i32 s59, s{sXG}, 112
    s_add_u32 s58, s58, s59
    v_add_u32 v3, s58, v3
    v_lshlrev_b32 v2, 4, v1
    s_mul_i32 s61, s{sW}, {8*896}
    s_mul_i32 s62, s{sW}, 928
    s_lshl_b32 s63, s{sM}, 6
    s_lshl_b32 s59, s{sXG}, 3
    s_add_u32 s63, s63, s59
    s_add_u32 s63, s63, s{sW}
    s_mul_i32 s68, s63, 896
    v_add_u32 v7, s68, v2
    v_cmp_gt_u32 vcc, 56, v1
    v_mov_b32 v8, 0x80000000
    s_mul_i32 s{sJ}, s{sXG}, 28
    s_add_u32 s{sJ}, s{sJ}, s{sM}
    v_cndmask_b32 v7, v8, v7, vcc
    s_mov_b32 s59, {F_EP}
    s_waitcnt lgkmcnt(0)
    s_load_dword s{sTAG}, s[12:13], s59""")
    srd(A, K_, 6, 7, NBX); srd(A, V_, 8, 9, NBX); srd(A, X_, 4, 5, NBX)
    A(f"""s_mov_b32 exec_hi, 0x00ffffff
    s_add_u32 m0, s62, {KT+928}
    s_nop 0
    buffer_load_dwordx4 v3, {R(K_)}, s61 offen lds
    s_add_u32 m0, s62, {VT}
    s_nop 0
    buffer_load_dwordx4 v3, {R(V_)}, s61 offen lds
    s_add_u32 m0, s62, {XT}
    s_cmp_eq_u32 s{sW}, 7
    buffer_load_dwordx4 v3, {R(X_)}, s61 offen lds
    s_cbranch_scc0 P1_NH
    v_add_u32 v4, {(-7168)&0xffffffff}, v3
    s_mov_b32 m0, {KT}
    s_nop 0
    buffer_load_dwordx4 v4, {R(K_)}, 0 offen lds
    s_mov_b64 exec, -1
    s_branch P1_H
    P1_NH:
    s_mov_b64 exec, -1""")
    srd(A, SM_, 10, 11, D*8)
    A(f"""v_bfe_u32 v4, v1, 5, 1
    v_and_b32 v5, 3, v1
    v_lshl_add_u32 v4, v4, 2, v5
    s_mul_i32 s59, s{sXG}, 56
    s_lshl_b32 s69, s{sW}, 3
    s_add_u32 s59, s59, s69
    v_add_lshl_u32 v4, v4, s59, 3
    buffer_load_dwordx2 v[10:11], v4, {R(SM_)}, 0 offen
    P1_H:""")
    vm.issue(3); tKVX = vm.issue()
    tXR = vm.issue(); A(f"buffer_load_dwordx4 v[16:19], v7, {R(X_)}, 0 offen")
    srd(A, WS_, 12, 13, WS_BYTES)
    A(f"""s_cmp_ge_u32 s{sM}, 28
    s_cbranch_scc1 P1_HLP
    s_lshr_b32 s58, s{sW}, 2
    s_and_b32 s59, s{sW}, 3
    s_lshl_b32 s68, s{sJ}, 1
    s_add_u32 s68, s68, s58
    s_lshl_b32 s68, s68, 12
    s_add_u32 s64, s64, s68
    s_addc_u32 s65, s65, 0""")
    srd(A, HK_, 64, 65, 4096)
    A(f"""s_mul_i32 s69, s{sW}, {CAS}
    s_add_u32 m0, s69, {CA+32}
    s_lshl_b32 s59, s59, 1
    s_add_u32 s59, s59, 2
    v_add_u32 v4, s59, v2""")
    for p in range(4): A(f"buffer_load_dwordx4 v4, {R(HK_)}, 0 offen offset:{1024*p} lds")
    A(f"""v_lshl_add_u32 v5, v1, 1, s59
    v_add_u32 v5, {(-32)&0xffffffff}, v5
    buffer_load_ushort v12, v5, {R(HK_)}, 0 offen
    v_lshl_add_u32 v13, v1, 1, s69
    s_lshl_b32 s68, s{sJ}, 2
    s_load_dword s14, s[66:67], s68
    s_branch P1_C
    P1_HLP:""")
    if cfg.codewarm:
        A("s_getpc_b64 s[64:65]\ns_and_b32 s64, s64, 0xffffff00")
        srd(A, HK_, 64, 65, "CODE_END-CODE_BEG-1024")
    A(f"""s_and_b32 s58, s{sM}, 3
    s_lshl_b32 s58, s58, 3
    s_add_u32 s58, s58, s{sW}
    s_lshl_b32 s58, s58, 10""")
    for p in range(5): A(f"buffer_load_dwordx4 v[24:27], v2, {R(HK_ if cfg.codewarm else X_)}, s58 offen" if p == 0 else f"buffer_load_dword v24, v2, {R(HK_ if cfg.codewarm else X_)}, s58 offen")
    A("P1_C:")
    vm.issue(5)
    A(f"""s_load_dwordx4 s[4:7], s[0:1], 56
    s_load_dwordx4 s[8:11], s[0:1], 72
    s_load_dwordx2 s[64:65], s[0:1], 88""")
    A(f"""v_bfe_u32 v4, v1, 4, 1
    v_and_b32 v5, 3, v1
    v_lshl_add_u32 v4, v4, 2, v5
    v_mul_u32_u24 v20, 928, v4
    v_bfe_u32 v5, v1, 2, 2
    v_mul_u32_u24 v6, 112, v5
    v_lshrrev_b32 v8, 5, v1
    s_lshl_b32 s58, s{sW}, 1
    v_add_lshl_u32 v8, v8, s58, 3
    v_add3_u32 v20, v20, v6, v8
    v_bfe_u32 v4, v1, 4, 1
    v_lshl_add_u32 v4, v4, 2, v5
    v_lshrrev_b32 v8, 1, v8
    v_and_b32 v6, 3, v1
    v_add_u32 v8, v8, v6
    v_lshl_add_u32 v4, v8, 1, v4
    v_and_b32 v4, 7, v4
    v_lshlrev_b32 v4, 4, v4
    v_lshl_add_u32 v21, v8, 7, v4
    v_add_u32 v21, {OUT}, v21
    v_lshrrev_b32 v8, 3, v0
    v_and_b32 v5, 7, v0
    v_lshl_add_u32 v4, v8, 1, v5
    v_and_b32 v4, 7, v4
    v_lshlrev_b32 v4, 4, v4
    v_lshl_add_u32 v22, v8, 7, v4
    v_add_u32 v22, {OUT}, v22
    s_mul_i32 s58, s{sXG}, 56
    v_add_u32 v8, s58, v8
    v_lshrrev_b32 v4, 1, v8
    v_lshlrev_b32 v4, 14, v4
    v_and_b32 v8, 1, v8
    v_lshl_add_u32 v4, v8, 12, v4
    v_lshl_add_u32 v4, v5, 4, v4
    s_lshl_b32 s58, s{sM}, 7
    v_add_u32 v23, s58, v4
    s_mov_b32 s15, 0x3f803f80
    v_mov_b32 v28, 0
    v_mov_b32 v29, 0""")
    stamp(1)
    vm.wait(tXR)
    for i in range(4): A(f"v_dot2_f32_bf16 v28, v{16+i}, s15, v28\nv_dot2_f32_bf16 v29, v{16+i}, v{16+i}, v29")
    A("s_nop 2")
    for dpp in ("quad_perm:[1,0,3,2] row_mask:0xf", "quad_perm:[2,3,0,1] row_mask:0xf", "row_half_mirror row_mask:0xf", "row_mirror row_mask:0xf",
                "row_bcast:15 row_mask:0xa", "row_bcast:31 row_mask:0xc"):
        A(f"""v_add_f32_dpp v28, v28, v28 {dpp} bank_mask:0xf
        v_add_f32_dpp v29, v29, v29 {dpp} bank_mask:0xf
        s_nop 0""")
    A(f"""v_mul_f32 v28, {fhex(1/448)}, v28
    v_mul_f32 v29, {fhex(1/448)}, v29
    v_fma_f32 v29, -v28, v28, v29
    v_max_f32 v29, 0, v29
    v_add_f32 v29, {fhex(1e-5)}, v29
    v_rsq_f32 v16, v29
    s_waitcnt lgkmcnt(0)
    s_add_u32 s{sTAG}, s{sTAG}, {TAGK}
    v_mul_f32 v17, -v28, v16
    v_mov_b32 v18, s{sTAG}
    v_mov_b32 v19, s{sTAG}
    s_lshl_b32 s63, s63, 4
    s_add_u32 s63, s63, {WS_S}
    v_mov_b32 v6, 0
    s_mov_b32 exec_lo, 0
    s_mov_b32 exec_hi, 0x80000000
    buffer_store_dwordx4 v[16:19], v6, {R(WS_)}, s63 offen sc1
    s_mov_b64 exec, -1""")
    vm.issue()
    A("s_barrier")
    stamp(2)
    srd(A, W1_, 4, 5, D*F*2); srd(A, W2_, 8, 9, D*F*2); srd(A, O_, 64, 65, NBX)
    A(f"""s_cmp_eq_u32 s{sW}, 7
    s_cbranch_scc1 P1_SK1""")
    for i, off in enumerate((KT+448, KT+928, KT+928+448, VT, VT+448)):
        A(f"ds_read_b64_tr_b16 v[{32+2*i}:{33+2*i}], v20 offset:{off}")
    A(f"""ds_read_b64_tr_b16 v[44:45], v20 offset:{XT}
    ds_read_b64_tr_b16 v[46:47], v20 offset:{XT+448}
    s_mov_b32 s58, 0xffff0000
    v_lshlrev_b32 v48, 16, v10
    v_and_b32 v49, s58, v10
    v_lshlrev_b32 v50, 16, v11
    v_and_b32 v51, s58, v11
    s_waitcnt lgkmcnt(4)""")
    for i in range(-3, 8):
        src = 32 + (i+4)//2
        A(f"v_and_b32 v{55+i}, s58, v{src}" if (i+4) & 1 else f"v_lshlrev_b32 v{55+i}, 16, v{src}")
    A("s_waitcnt lgkmcnt(0)")
    A(f"ds_write_b128 v21, v[44:47] offset:7168")
    for t in range(8):
        A(f"""v_mul_f32 v{64+t}, v{55+t}, v48
        v_fmac_f32 v{64+t}, v{54+t}, v49
        v_fmac_f32 v{64+t}, v{53+t}, v50
        v_fmac_f32 v{64+t}, v{52+t}, v51""")
        A(f"v_and_b32 v72, s58, v{38+t//2}" if t & 1 else f"v_lshlrev_b32 v72, 16, v{38+t//2}")
        A(f"v_mul_f32 v{64+t}, v{64+t}, v72")
    for i in range(4): A(f"v_cvt_pk_bf16_f32 v{76+i}, v{71-2*i}, v{70-2*i}")
    A(f"""ds_write_b128 v21, v[76:79]
    s_waitcnt lgkmcnt(0)
    P1_SK1:
    s_barrier
    s_cmp_eq_u32 s{sW}, 7
    s_cbranch_scc1 P1_SK2
    ds_read_b128 v[32:35], v22
    ds_read_b128 v[36:39], v22 offset:7168
    s_mov_b32 s58, 8192
    s_waitcnt lgkmcnt(1)
    buffer_store_dwordx4 v[32:35], v23, {R(WS_)}, 0 offen {cfg.sc_t}
    s_waitcnt lgkmcnt(0)
    buffer_store_dwordx4 v[36:39], v23, {R(WS_)}, s58 offen {cfg.sc_t}
    P1_SK2:""")
    stamp(3)
    vm.waitall(True)
    A(f"""s_barrier
    s_lshl_b32 s61, s{sXG}, 7
    s_add_u32 s61, s61, {F_A}
    v_mov_b32 v18, s{sTAG}
    s_cmp_lg_u32 s{sW}, 0
    s_cbranch_scc1 P1_NF
    s_lshl_b32 s62, s{sM}, 2
    s_add_u32 s62, s62, s61
    s_mov_b64 exec, 1
    buffer_store_dword v18, v6, {R(WS_)}, s62 offen {cfg.sc_fa}
    s_mov_b64 exec, -1
    P1_NF:
    s_cmp_ge_u32 s{sM}, 28
    s_cbranch_scc1 HELPER""")
    A(f"""s_mov_b64 exec, 0xffff
    ds_write_b16 v13, v12 offset:{CA}
    s_mov_b64 exec, -1
    v_mov_b32 v8, 0
    v_mov_b32 v9, 0
    s_lshr_b32 s58, s{sW}, 2
    s_mul_i32 s58, s58, {XKS}
    v_lshl_add_u32 v7, v1, 3, s58
    s_mov_b32 exec_hi, 0x0fffffff
    ds_write_b64 v7, v[8:9] offset:{XK}
    s_mov_b64 exec, -1
    s_mul_i32 s{sRT}, s{sM}, 37
    s_lshr_b32 s{sRT}, s{sRT}, 8
    s_mul_i32 s{sFS}, s{sRT}, 7
    s_sub_u32 s{sFS}, s{sM}, s{sFS}
    s_lshr_b32 s69, s{sW}, 1
    s_add_u32 s69, s69, s{sRT}
    s_and_b32 s69, s69, 3
    s_lshl_b32 s58, s{sXG}, 2
    s_add_u32 s{sRT}, s{sRT}, s58""")
    A(f"""v_and_b32 v10, 15, v1
    v_lshrrev_b32 v11, 4, v1
    v_and_b32 v12, 3, v10
    v_mul_u32_u24 v12, {CAS}, v12
    v_and_b32 v13, 12, v10
    v_lshlrev_b32 v13, 1, v13
    v_lshl_add_u32 v13, v11, 4, v13
    s_bfe_u32 s58, s{sW}, 0x10001
    s_and_b32 s59, s{sW}, 1
    s_lshl_b32 s59, s59, 8
    s_mul_i32 s62, s58, {4*CAS}
    s_add_u32 s62, s62, s59
    v_add3_u32 v14, v12, v13, s62
    v_lshlrev_b32 v20, 5, v10
    v_lshlrev_b32 v16, 4, v11
    v_sub_u32 v20, v20, v16
    s_mul_i32 s62, s58, {XKS}
    s_add_u32 s62, s62, {XK+496-192}
    s_sub_u32 s62, s62, s59
    v_add_u32 v20, s62, v20""")
    A(f"""v_lshrrev_b32 v5, 2, v1
    v_mul_u32_u24 v5, 3584, v5
    v_and_b32 v6, 3, v1
    v_lshl_add_u32 v3, v6, 4, v5
    s_lshl_b32 s68, s{sFS}, 3
    s_add_u32 s68, s68, s{sW}
    s_lshl_b32 s58, s68, 6
    v_add_u32 v3, s58, v3
    v_bfe_u32 v5, v1, 2, 2
    v_lshrrev_b32 v12, 5, v1
    v_lshl_add_u32 v12, v12, 2, v5
    v_lshlrev_b32 v12, 6, v12
    v_bfe_u32 v5, v1, 4, 1
    v_lshl_add_u32 v12, v5, 5, v12
    v_lshl_add_u32 v12, v6, 3, v12
    s_mul_i32 s66, s{sW}, {NSL*1024}
    s_add_u32 s66, s66, {WST}
    v_add_u32 v12, s66, v12
    v_and_b32 v21, 31, v1
    v_lshlrev_b32 v22, 2, v21
    v_mov_b32 v16, 0
    s_cmp_lg_u32 s{sW}, 0
    s_cbranch_scc1 H1_W""")
    poll(22, "s61", "fa")
    A("H1_W:\ns_waitcnt lgkmcnt(0)\ns_barrier")
    stamp(4)
    A(f"""s_lshl_b32 s58, s{sJ}, 14
    s_lshl_b32 s59, s{sW}, 10
    s_add_u32 s58, s58, s59
    s_lshr_b32 s61, s{sW}, 2
    s_mul_i32 s61, s61, {XKS-4096}
    s_add_u32 s61, s61, s59
    s_add_u32 m0, s61, {XK+480}
    s_add_u32 s62, s58, 8192
    buffer_load_dwordx4 v2, {R(WS_)}, s58 offen sc1 lds
    s_add_u32 m0, s59, {XX}
    s_cmp_ge_u32 s{sW}, 4
    buffer_load_dwordx4 v2, {R(WS_)}, s62 offen sc1 lds
    s_cbranch_scc1 CONV_HI""")
    tKV = vm.issue(); tXX = vm.issue()
    def w1dma(it):
        if it % 7 == 0:
            A(f"""s_add_u32 s67, s69, {it//7}
            s_and_b32 s67, s67, 3
            s_mul_i32 s67, s67, {7*57344}""")
        else:
            A(f"s_add_u32 s67, s67, 57344")
        A(f"""s_add_u32 m0, s66, {(it % NSL)*1024}
        s_nop 0
        buffer_load_dwordx4 v3, {R(W1_)}, s67 offen lds""")
        return vm.issue()
    W1R = 144
    def w1ring(tk, lo, hi):
        pend = None
        for it in range(lo, hi):
            vm.wait(tk[it])
            r = W1R + 4*it; so = (it % NSL)*1024
            lg.issue(); A(f"ds_read_b64_tr_b16 v[{r}:{r+1}], v12 offset:{so}")
            t = lg.issue(); A(f"ds_read_b64_tr_b16 v[{r+2}:{r+3}], v12 offset:{so+512}")
            if pend is not None:
                pit, pt = pend
                lg.wait(pt)
                if pit + NSL < 28: tk[pit+NSL] = w1dma(pit+NSL)
                for i in range(4): A(f"v_dot2_f32_bf16 v16, v{W1R+4*pit+i}, s15, v16")
            pend = (it, t)
        if pend is not None:
            pit, pt = pend
            lg.wait(pt)
            if pit + NSL < 28: tk[pit+NSL] = w1dma(pit+NSL)
            for i in range(4): A(f"v_dot2_f32_bf16 v16, v{W1R+4*pit+i}, s15, v16")
    st0 = vm.state()
    tk_lo = {it: w1dma(it) for it in range(NSL)}
    vm.wait(tKV)
    A("s_barrier")
    stamp(5)
    acc = {c: 32+4*c for c in range(8)}
    conv_body(A, lg, list(range(8)), 14, 20, acc, [64+4*i for i in range(20)])
    A(f"""s_lshl_b32 s58, s{sW}, 13
    s_add_u32 s58, s58, {RED}
    v_add_u32 v17, s58, v2
    s_nop 4""")
    for c in range(8):
        lg.issue(); A(f"ds_write_b128 v17, v[{32+4*c}:{35+4*c}] offset:{1024*c}")
    vm.wait(tXX); lg.waitall()
    A("s_branch CONV_J")
    st_lo = vm.state()
    vm.restore(st0)
    A(f"""CONV_HI:
    s_and_b32 s58, s{sW}, 3
    s_lshl_b32 s58, s58, 13
    s_add_u32 s61, s58, {WS_S}
    s_add_u32 s62, s61, 4096""")
    for i in range(8):
        tS = vm.issue(); A(f"buffer_load_dwordx4 v[{32+4*i}:{35+4*i}], v2, {R(WS_)}, s{61 if i < 4 else 62} offen offset:{1024*(i&3)} sc1")
    tk_hi = {it: w1dma(it) for it in range(NSL)}
    vm.wait(tKV)
    A("s_barrier")
    vm.wait(tS)
    def scheck(lbl):
        A(f"v_cmp_ne_u32 vcc, s{sTAG}, v34")
        for i in range(1, 8):
            A(f"v_cmp_ne_u32 s[62:63], s{sTAG}, v{34+4*i}\ns_or_b64 vcc, vcc, s[62:63]")
        A(f"s_cmp_eq_u64 vcc, 0\ns_cbranch_scc1 {lbl}")
    scheck("S_OK")
    A("s_mov_b32 s60, 0\nS_RETRY:\ns_add_u32 s62, s61, 4096")
    for i in range(8):
        A(f"buffer_load_dwordx4 v[{32+4*i}:{35+4*i}], v2, {R(WS_)}, s{61 if i < 4 else 62} offen offset:{1024*(i&3)} sc1")
    A("s_waitcnt vmcnt(0)")
    scheck("S_OK")
    A(f"""s_add_u32 s60, s60, 1
    s_cmp_lt_u32 s60, {cfg.timeout}
    s_cbranch_scc1 S_RETRY
    S_OK:
    s_lshr_b32 s58, s58, 1
    s_add_u32 s58, s58, {SS}
    v_lshl_add_u32 v17, v1, 3, s58""")
    for i in range(8):
        lg.issue(); A(f"ds_write_b64 v17, v[{32+4*i}:{33+4*i}] offset:{512*i}")
    w1ring(tk_hi, 0, cfg.n47)
    lg.waitall()
    st_hi = vm.state()
    A("CONV_J:\ns_barrier")
    stamp(6)
    A(f"""s_lshr_b32 s58, s{sW}, 2
    s_and_b32 s59, s{sW}, 3
    s_lshl_b32 s61, s58, 14
    s_lshl_b32 s62, s59, 11
    s_add_u32 s61, s61, s62
    s_add_u32 s61, s61, {RED}
    v_add_u32 v17, s61, v2
    ds_read_b128 v[64:67], v17
    ds_read_b128 v[68:71], v17 offset:8192
    ds_read_b128 v[72:75], v17 offset:1024
    ds_read_b128 v[76:79], v17 offset:9216
    v_lshlrev_b32 v4, 5, v10
    v_lshl_add_u32 v4, v11, 3, v4
    s_lshl_b32 s59, s59, 10
    s_mul_i32 s61, s58, {XKS}
    s_add_u32 s61, s61, s59
    v_xor_b32 v5, 8, v4
    v_add_u32 v5, s61, v5
    s_lshl_b32 s61, s58, 12
    s_add_u32 s61, s61, s59
    v_add_u32 v6, s61, v4
    s_lshl_b32 s61, s59, 2
    v_lshl_add_u32 v7, v4, 2, s61
    ds_read_b64 v[80:81], v5 offset:{XK+480}
    ds_read_b64 v[82:83], v5 offset:{XK+480+512}
    ds_read_b64 v[84:85], v6 offset:{XX}
    ds_read_b64 v[86:87], v6 offset:{XX+512}
    ds_read_b128 v[88:91], v7 offset:{SS}
    ds_read_b128 v[92:95], v7 offset:{SS+16}
    ds_read_b128 v[96:99], v7 offset:{SS+2048}
    ds_read_b128 v[100:103], v7 offset:{SS+2048+16}
    s_lshl_b32 s61, s14, 16
    s_and_b32 s62, s14, 0xffff0000
    s_cmp_eq_u32 s58, 0
    s_cselect_b32 s61, s61, s62
    s_mov_b32 s62, 0xffff0000
    v_lshrrev_b32 v4, 2, v10
    v_and_b32 v5, 1, v11
    v_lshl_add_u32 v4, v5, 2, v4
    s_lshr_b32 s59, s59, 7
    v_add_u32 v4, s59, v4
    v_mul_u32_u24 v4, 57344, v4
    v_and_b32 v5, 3, v10
    v_lshlrev_b32 v5, 5, v5
    v_lshrrev_b32 v6, 1, v11
    v_lshl_add_u32 v5, v6, 4, v5
    v_add_u32 v4, v4, v5
    s_lshl_b32 s63, s{sJ}, 1
    s_add_u32 s63, s63, s58
    s_lshl_b32 s63, s63, 7
    s_add_u32 s63, s63, {WS_H}
    s_waitcnt lgkmcnt(0)""")
    def unp(dst, reg, hi): return f"v_and_b32 v{dst}, s62, v{reg}" if hi else f"v_lshlrev_b32 v{dst}, 16, v{reg}"
    for t in range(2):
        kv, xx, ac, ot, sr = 80+2*t, 84+2*t, 64+8*t, 68+8*t, 88+8*t
        src = {3: (kv, 0), 2: (kv, 1), 1: (kv+1, 0), 0: (kv+1, 1)}
        for r in range(4):
            A(f"v_add_f32 v{ac+r}, v{ac+r}, v{ot+r}")
            A(unp(104, *src[r])); A(unp(105, xx+(r>>1), r&1))
            A(f"v_fmac_f32 v{ac+r}, s61, v104")
            A(f"v_fma_f32 v106, v105, v{sr+2*r}, v{sr+2*r+1}")
            A(f"v_fma_f32 v{ac+r}, v{ac+r}, v106, v105")
        A(f"v_cvt_pk_bf16_f32 v{108+2*t}, v{ac}, v{ac+1}\nv_cvt_pk_bf16_f32 v{109+2*t}, v{ac+2}, v{ac+3}")
    A(f"""s_nop 1
    v_permlane16_swap_b32 v108, v110
    v_permlane16_swap_b32 v109, v111
    buffer_store_dwordx4 v[108:111], v4, {R(WS_)}, s63 offen sc1
    s_waitcnt vmcnt(0)
    s_barrier""")
    stamp(7)
    A(f"""s_cmp_lg_u32 s{sW}, 7
    s_cbranch_scc1 H2_NF
    v_lshlrev_b32 v4, 14, v1
    s_lshl_b32 s58, s{sJ}, 6
    s_add_u32 s58, s58, {F_2}
    s_mov_b64 exec, 0xff
    buffer_store_dword v18, v4, {R(WS_)}, s58 offen sc1
    s_mov_b64 exec, -1
    H2_NF:""")
    dma_swz(A, 13, 1, 4, 5, 896)
    A(f"""s_lshl_b32 s58, s{sFS}, 7
    v_add_u32 v13, s58, v13
    s_cmp_ge_u32 s{sW}, 4
    s_cbranch_scc1 RING_HI""")
    vm.restore((st_lo[0], st_lo[0])); w1ring(tk_lo, 0, 28)
    A("s_branch RING_J\nRING_HI:")
    assert vm.issued == vm.done
    vm.restore((st_hi[0], st_hi[0]))
    w1ring(tk_hi, cfg.n47, 28)
    assert vm.issued == vm.done
    A("RING_J:")
    tr_pattern(A, 4, 5, 1, 6, 7, 8)
    A(f"""v_add_u32 v7, s66, v4
    v_add_u32 v8, s66, v5
    s_mul_i32 s67, s{sW}, {224*896}""")
    W2A, W2Bq, NA = 80, 144, 8
    def w2reg(ks): return W2A + 8*ks if ks < NA else W2Bq + 8*(ks-NA)
    def w2dma(base, off):
        A(f"""s_add_u32 m0, {base}, {off}
        s_add_u32 s59, s67, {8*896}
        buffer_load_dwordx4 v13, {R(W2_)}, s67 offen lds
        s_add_u32 m0, {base}, {off+1024}
        s_add_u32 s67, s67, {16*896}
        buffer_load_dwordx4 v13, {R(W2_)}, s59 offen lds""")
        vm.issue(); return vm.issue()
    def w2tr(ks, off):
        r = w2reg(ks); t = None
        for dt in range(2):
            for j in range(2):
                t = lg.issue(); A(f"ds_read_b64_tr_b16 v[{r+4*dt+2*j}:{r+4*dt+2*j+1}], v{7+dt} offset:{off+1024*j}")
        return t
    tk = {ks: w2dma("s66", 2048*ks) for ks in range(3)}
    srd(A, SM_, 6, 7, F*2)
    A(f"""s_lshl_b32 s58, s68, 6
    v_lshl_add_u32 v6, v21, 1, s58
    buffer_load_ushort v17, v6, {R(SM_)}, 0 offen
    v_mov_b32 v19, v16
    s_lshl_b32 s58, s{sW}, 8
    s_add_u32 s58, s58, {CS}
    v_permlane32_swap_b32 v16, v19
    v_add_u32 v6, s58, v22
    v_lshrrev_b32 v9, 5, v1
    v_add_f32 v16, v16, v19
    v_lshl_add_u32 v9, v9, 4, s58
    ds_write_b32 v6, v16""")
    tb1 = vm.issue(); lg.issue()
    pend = None
    for ks in range(NA):
        vm.wait(tk[ks])
        t = w2tr(ks, 2048*(ks % 3))
        if pend is not None:
            lg.wait(pend[1])
            if pend[0]+3 < NA: tk[pend[0]+3] = w2dma("s66", 2048*(pend[0] % 3))
        pend = (ks, t)
        if ks == 1:
            vm.wait(tb1)
            A("v_lshlrev_b32 v17, 16, v17"); lg.issue(); A("ds_write_b32 v6, v17 offset:128")
    lg.waitall(); assert vm.issued == vm.done
    dma_swz(A, 14, 1, 6, 15, 128)
    A(f"""s_lshl_b32 s61, s{sXG}, 7
    s_add_u32 s61, s61, {F_GO}
    v_mov_b32 v6, 0
    s_cmp_lg_u32 s{sW}, 7
    s_cbranch_scc1 H2_W""")
    stamp(8)
    poll(6, "s61", "go")
    A("H2_W:\ns_barrier")
    stamp(9)
    A(f"""s_mul_i32 s58, s{sRT}, 57344
    s_mul_i32 s61, s{sW}, 7168
    s_add_u32 s58, s58, s61
    s_add_u32 s58, s58, {WS_H}
    s_add_u32 m0, s61, {HT}
    s_add_u32 s62, s58, 4096""")
    for i in range(4): A(f"buffer_load_dwordx4 v14, {R(WS_)}, s58 offen offset:{1024*i} sc1 lds")
    A(f"s_add_u32 m0, s61, {HT+4096}\ns_mul_i32 s66, s{sW}, 12288")
    for i in range(3): A(f"buffer_load_dwordx4 v14, {R(WS_)}, s62 offen offset:{1024*i} sc1 lds")
    tHT = vm.issue(7)
    A(f"s_add_u32 s66, s66, {W2B}")
    tk2 = {ks: w2dma("s66", 2048*(ks-NA)) for ks in range(NA, 14)}
    A(f"""v_add_u32 v7, s66, v4
    v_add_u32 v8, s66, v5
    s_mul_i32 s58, s69, {7*2048}
    v_add_u32 v4, s58, v4
    v_add_u32 v5, s58, v5
    s_and_b32 s59, s{sW}, 1
    s_lshl_b32 s59, s59, 6
    v_xor_b32 v6, s59, v4
    s_mov_b32 s62, 0xffff0000
    v_mov_b32 v10, 0
    v_mov_b32 v11, 0
    v_mov_b32 v12, 0
    v_mov_b32 v13, 0""")
    vm.wait(tHT)
    A("s_barrier")
    stamp(10)
    ACC0, ACC1 = 32, 48
    BB = [64, 68, 72, 76]
    def segadv(regs, it):
        A(f"""s_add_u32 s60, s69, {it//7}
        s_and_b32 s60, s60, 3
        s_cselect_b32 s60, 1, -3
        s_mul_i32 s60, s60, {7*2048}""")
        for r in regs: A(f"v_add_u32 v{r}, s60, v{r}")
    def bread(it, areg, dst):
        bo = HT + (it % 7)*2048
        lg.issue(); A(f"ds_read_b64_tr_b16 v[{dst}:{dst+1}], v{areg} offset:{bo}")
        t = lg.issue(); A(f"ds_read_b64_tr_b16 v[{dst+2}:{dst+3}], v{areg} offset:{bo+1024}")
        return t
    PF = 2
    SB = [48, 52]
    tB = {}; tSt = {}
    def issueA(it):
        if it % 7 == 0 and it > 0: segadv([4, 6], it)
        tB[it] = bread(it, 4, BB[it % 4])
        if it % 4 == 0: tSt[it] = bread(it, 6, SB[(it//4) & 1])
    for it in range(PF): issueA(it)
    for it in range(28):
        if it + PF < 28: issueA(it + PF)
        lg.wait(tB[it])
        A(f"v_mfma_f32_32x32x16_bf16 {v(ACC0,16)}, {v(W1R+4*it,4)}, {v(BB[it%4],4)}, {v(ACC0,16) if it else '0'}")
        lg.wait(tSt[it - it % 4])
        r = SB[(it//4) & 1] + it % 4
        A(f"""v_lshlrev_b32 v24, 16, v{r}
        v_and_b32 v25, s62, v{r}
        v_add_f32 v10, v10, v24
        v_fmac_f32 v11, v24, v24
        v_add_f32 v12, v12, v25
        v_fmac_f32 v13, v25, v25""")
    def gelu_ops(acc, r, n, tset):
        ops = []
        toks = {}
        def rd(g):
            def f():
                lg.issue(); A(f"ds_read_b128 v[16:19], v9 offset:{32*g}")
                toks[g] = lg.issue(); A(f"ds_read_b128 v[20:23], v9 offset:{128+32*g}")
            return f
        ops.append(rd(0))
        for g in range(4):
            T = 24 + 4*(g & 1); a = acc + 4*g
            ops.append(lambda g=g: lg.wait(toks[g]))
            for i in range(4): ops.append(f"v_fma_f32 v{T+i}, v{n}, v{16+i}, v{20+i}")
            if g < 3: ops.append(rd(g+1))
            for i in range(4): ops.append(f"v_fma_f32 v{a+i}, v{a+i}, v{r}, v{T+i}")
            for i in range(4): ops.append(f"v_mul_f32 v{T+i}, v{a+i}, v{a+i}")
            for i in range(4): ops.append(f"v_fma_f32 v{T+i}, v{T+i}, s63, v15")
            for i in range(4): ops.append(f"v_mul_f32 v{T+i}, v{T+i}, v{a+i}")
            for i in range(4): ops.append(f"v_exp_f32 v{T+i}, v{T+i}")
            for i in range(4): ops.append(f"v_add_f32 v{T+i}, 1.0, v{T+i}")
            for i in range(4): ops.append(f"v_rcp_f32 v{T+i}, v{T+i}")
            for i in range(4): ops.append(f"v_mul_f32 v{a+i}, v{a+i}, v{T+i}")
            o = acc + 8*(g >> 1) + 2*(g & 1)
            ops.append(f"v_cvt_pk_bf16_f32 v{o}, v{a}, v{a+1}")
            ops.append(f"v_cvt_pk_bf16_f32 v{o+1}, v{a+2}, v{a+3}")
            if g & 1:
                def st(g=g, o=o):
                    tset.append(vm.issue()); A(f"buffer_store_dwordx4 v[{o-2}:{o+1}], v2, {R(WS_)}, s61 offen offset:{2048*(g>>1)} {cfg.sc_hid}")
                ops.append(st)
        return ops
    def cost(op):
        if callable(op): return 0
        return 2 if op.startswith(("v_exp", "v_rcp", "v_rsq")) else 1
    def run(op):
        if callable(op): op()
        else: A(op)
    pre = []
    pre += ["v_add_f32 v10, v10, v12", "v_add_f32 v11, v11, v13", "s_nop 0", "v_mov_b32 v12, v10", "v_mov_b32 v13, v11",
            f"s_and_b32 s58, s{sW}, 1", "s_lshl_b32 s58, s58, 10", f"s_lshr_b32 s59, s{sW}, 1", "s_lshl_b32 s59, s59, 8",
            "v_permlane32_swap_b32 v10, v12", "v_permlane32_swap_b32 v11, v13",
            "s_add_u32 s58, s58, s59", f"s_add_u32 s58, s58, {ST}",
            "v_add_f32 v10, v10, v12", "v_add_f32 v11, v11, v13", "v_lshl_add_u32 v24, v22, 1, s58"]
    hold = {}
    def wr():
        hold["w"] = lg.issue(); A("ds_write_b64 v24, v[10:11]")
    def bar2():
        lg.wait(hold["w"]); A("s_barrier")
        A(f"v_lshlrev_b32 v14, 1, v22\nv_add_u32 v14, {ST}, v14")
        for t in range(2):
            for q in range(4):
                hold[t] = lg.issue(); A(f"ds_read_b64 v[{16+8*t+2*q}:{17+8*t+2*q}], v14 offset:{1024*t+256*q}")
    fin = []
    for t in range(2):
        b = 16+8*t; r, n = 10+2*t, 11+2*t
        fin.append(lambda t=t: lg.wait(hold[t]))
        fin += [f"v_add_f32 v{b}, v{b}, v{b+2}", f"v_add_f32 v{b+1}, v{b+1}, v{b+3}", f"v_add_f32 v{b+4}, v{b+4}, v{b+6}", f"v_add_f32 v{b+5}, v{b+5}, v{b+7}",
                f"v_add_f32 v{b}, v{b}, v{b+4}", f"v_add_f32 v{b+1}, v{b+1}, v{b+5}",
                f"v_mul_f32 v{b}, {fhex(1/448)}, v{b}", f"v_mul_f32 v{b+1}, {fhex(1/448)}, v{b+1}",
                f"v_fma_f32 v{b+1}, -v{b}, v{b}, v{b+1}", f"v_max_f32 v{b+1}, 0, v{b+1}", f"v_add_f32 v{b+2}, {fhex(1e-5)}, v{b+1}",
                f"v_rsq_f32 v{b+2}, v{b+2}", "s_nop 0", f"v_mul_f32 v{b+3}, v{b+2}, v{b+2}", f"v_mul_f32 v{b+3}, v{b+3}, v{b+1}",
                f"v_add_f32 v{b+3}, {fhex(1e-5)}, v{b+3}", f"v_rsq_f32 v{b+3}, v{b+3}", "s_nop 0",
                f"v_mul_f32 v{r}, v{b+2}, v{b+3}", f"v_mul_f32 v{n}, -v{b}, v{r}"]
    setup = [f"s_mov_b32 s63, {fhex(GC2)}", f"v_mov_b32 v15, {fhex(GC1)}",
             f"s_mul_i32 s61, s{sRT}, 229376", "s_lshl_b32 s58, s68, 12", "s_add_u32 s61, s61, s58", f"s_add_u32 s61, s61, {WS_HID}"]
    st0t = []
    fill = pre + [wr, bar2] + fin + setup + gelu_ops(ACC0, 10, 11, st0t)
    tot = sum(cost(o) for o in fill)
    tB = {}
    for it in range(PF):
        tB[it] = bread(it, 5, BB[it % 4])
    fi = 0; spent = 0
    for it in range(28):
        if it + PF < 28:
            if (it+PF) % 7 == 0: segadv([5], it+PF)
            tB[it+PF] = bread(it+PF, 5, BB[(it+PF) % 4])
        lg.wait(tB[it])
        A(f"v_mfma_f32_32x32x16_bf16 {v(ACC1,16)}, {v(W1R+4*it,4)}, {v(BB[it%4],4)}, {v(ACC1,16) if it else '0'}")
        target = tot*(it+1)/26
        while fi < len(fill) and spent < target:
            run(fill[fi]); spent += cost(fill[fi]); fi += 1
        if it >= 14 and it % 2 == 0 and NA + (it-14)//2 < 14:
            ks = NA + (it-14)//2
            vm.wait(tk2[ks]); w2tr(ks, 2048*(ks-NA))
    assert fi == len(fill)
    A(f"""s_lshl_b32 s58, s{sRT}, 9
    s_add_u32 s67, s58, {F_3}
    s_lshl_b32 s65, s68, 2
    s_add_u32 s65, s65, s67
    s_add_u32 s66, s65, 256
    s_add_u32 s61, s61, 1024
    s_mul_i32 s59, s{sW}, 28
    v_lshl_add_u32 v6, v1, 2, s59
    s_mul_i32 s64, s{sRT}, 229376
    s_mul_i32 s59, s{sW}, {14*2048}
    s_add_u32 s64, s64, s59
    s_add_u32 s64, s64, {WS_HID}
    v_mov_b32 v4, 0
    v_mov_b32 v5, s{sTAG}""")
    lg.waitall()
    stamp(11)
    def flag3(sreg):
        A(f"""s_mov_b64 exec, 1
        buffer_store_dword v5, v4, {R(WS_)}, {sreg} offen {cfg.sc_f3}
        s_mov_b64 exec, -1""")
        vm.issue()
    BL = [192+4*i for i in range(16)]
    tH = {}
    def hload(t, ks):
        n = 14*t + ks; r = BL[n % 16]
        A(f"s_add_u32 s59, s64, {2048*ks + 1024*t}")
        tH[n] = vm.issue(); A(f"buffer_load_dwordx4 v[{r}:{r+3}], v2, {R(WS_)}, s59 offen sc1")
    st1t = []
    g1 = gelu_ops(ACC1, 12, 13, st1t)
    half = [i for i, o in enumerate(g1) if callable(o) and o.__name__ == "st"][0]
    fpos = int(half*cfg.f0pos)
    for o in g1[:fpos]: run(o)
    vm.wait(st0t[-1]); flag3("s65")
    for o in g1[fpos:half]: run(o)
    if cfg.nb0 > 0:
        vm.waitall()
        poll(6, "s67", "f3", mask="s_mov_b64 exec, 0x7f", vdat=14)
        for ks in range(cfg.nb0): hload(0, ks)
        for o in g1[half:]: run(o)
        for ks in range(cfg.nb0, 14): hload(0, ks)
        vm.wait(st1t[-1]); flag3("s66")
    else:
        for o in g1[half:]: run(o)
        vm.waitall(); flag3("s66")
        poll(6, "s67", "f3", mask="s_mov_b64 exec, 0x7f", vdat=14)
        for ks in range(14): hload(0, ks)
    A("s_add_u32 s67, s67, 256")
    stamp(12)
    G2A = {(0, 0): 32, (1, 0): 64, (0, 1): 48, (1, 1): 16}
    for ks in range(14):
        vm.wait(tH[ks])
        for dt in range(2):
            a = G2A[dt, 0]
            A(f"v_mfma_f32_32x32x16_bf16 {v(a,16)}, {v(w2reg(ks)+4*dt,4)}, {v(BL[ks%16],4)}, {v(a,16) if ks else '0'}")
    vm.waitall()
    poll(6, "s67", "f3b", mask="s_mov_b64 exec, 0x7f", vdat=14)
    for ks in range(14): hload(1, ks)
    A(f"""v_and_b32 v7, 7, v1
    v_and_b32 v5, 31, v1
    v_lshlrev_b32 v5, 7, v5
    v_lshrrev_b32 v6, 5, v1
    v_lshl_add_u32 v5, v6, 3, v5
    s_lshl_b32 s58, s{sW}, 13
    s_add_u32 s58, s58, {PP}
    v_add_u32 v9, s58, v5""")
    tr_pattern(A, 10, 11, 1, 12, 13, 14)
    A(f"""s_lshr_b32 s58, s{sW}, 2
    s_bfe_u32 s59, s{sW}, 0x10001
    s_and_b32 s61, s{sW}, 1
    s_lshl_b32 s61, s61, 1
    s_lshl_b32 s58, s58, 2
    s_add_u32 s58, s58, s61
    s_lshl_b32 s61, s{sFS}, 3
    s_add_u32 s61, s61, s58
    s_lshl_b32 s61, s61, 10
    s_lshl_b32 s62, s59, 6
    v_xor_b32 v10, s62, v10
    v_add_u32 v10, s61, v10
    ds_read_b64_tr_b16 v[12:13], v10 offset:{HT}
    ds_read_b64_tr_b16 v[14:15], v10 offset:{HT+1024}
    s_lshl_b32 s59, s59, 12
    s_add_u32 s59, s59, {PP+8*8192}
    v_add_u32 v5, s59, v5
    v_xor_b32 v6, s58, v7
    v_lshl_add_u32 v11, v6, 4, v5
    v_xor_b32 v8, 16, v11""")
    srd(A, SM_, 10, 11, D*2)
    for ks in range(14):
        vm.wait(tH[14+ks])
        for dt in range(2):
            a = G2A[dt, 1]
            A(f"v_mfma_f32_32x32x16_bf16 {v(a,16)}, {v(w2reg(ks)+4*dt,4)}, {v(BL[(14+ks)%16],4)}, {v(a,16) if ks else '0'}")
    A(f"""s_lshl_b32 s62, s{sFS}, 7
    v_lshl_add_u32 v4, v7, 4, s62
    buffer_load_dwordx4 v[80:83], v4, {R(SM_)}, 0 offen
    s_waitcnt lgkmcnt(0)
    s_barrier""")
    stamp(13)
    A(f"""ds_write_b64 v11, v[12:13]
    ds_write_b64 v8, v[14:15]""")
    for pc in range(8):
        A(f"v_xor_b32 v6, {pc}, v7\nv_lshl_add_u32 v{84+pc}, v6, 4, v9")
    n = 0
    for rt in range(2):
        for dt in range(2):
            for a in range(4):
                r = G2A[dt, rt]+4*a; o = 96+2*n; n += 1
                A(f"""v_cvt_pk_bf16_f32 v{o}, v{r}, v{r+1}
                v_cvt_pk_bf16_f32 v{o+1}, v{r+2}, v{r+3}
                ds_write_b64 v{84+4*dt+a}, v[{o}:{o+1}] offset:{4096*rt}""")
                if n == 8: A("s_waitcnt lgkmcnt(4)")
    A(f"""v_lshrrev_b32 v5, 3, v0
    v_and_b32 v6, 7, v5
    v_xor_b32 v6, v6, v7
    v_lshlrev_b32 v10, 7, v5
    v_lshl_add_u32 v10, v6, 4, v10
    v_add_u32 v10, {PP}, v10
    v_add_u32 v11, 32768, v10
    s_waitcnt lgkmcnt(0)
    s_barrier""")
    for i in range(9):
        A(f"ds_read_b128 v[{32+4*i}:{35+4*i}], v{10 if i < 4 else 11} offset:{8192*(i if i < 4 else i-4)}")
    A(f"""s_lshl_b32 s58, s{sRT}, 6
    v_add_u32 v5, s58, v5
    v_mul_u32_u24 v5, 896, v5
    v_add_u32 v5, v5, v4
    s_mov_b32 s59, 0xffff0000
    s_mov_b32 s60, 0x3f80
    s_mov_b32 s61, 0x3f800000
    s_waitcnt vmcnt(0)""")
    for i in range(4):
        A(f"v_lshlrev_b32 v{72+2*i}, 16, v{80+i}\nv_and_b32 v{73+2*i}, s59, v{80+i}")
    for i in range(9):
        A(f"s_waitcnt lgkmcnt({8-i})")
        for d in range(4):
            A(f"v_dot2_f32_bf16 v{72+2*d}, v{32+4*i+d}, s60, v{72+2*d}\nv_dot2_f32_bf16 v{73+2*d}, v{32+4*i+d}, s61, v{73+2*d}")
    A("s_nop 2")
    for d in range(4): A(f"v_cvt_pk_bf16_f32 v{84+d}, v{72+2*d}, v{73+2*d}")
    A(f"buffer_store_dwordx4 v[84:87], v5, {R(O_)}, 0 offen")
    if cfg.stamp:
        A("""s_waitcnt vmcnt(0)
        s_memrealtime s[98:99]
        s_memtime s[58:59]
        s_waitcnt lgkmcnt(0)
        s_sub_u32 s58, s58, s100
        v_mov_b32 v19, s58""")
        for i in range(15): A(f"v_mov_b32 v{4+i}, s{70+2*i}")
        A(f"""s_lshl_b32 s58, s2, 3
        s_add_u32 s58, s58, s{sW}
        s_lshl_b32 s58, s58, 6
        s_add_u32 s58, s58, {WS_STAMP}
        v_mov_b32 v2, 0
        s_mov_b64 exec, 1""")
        for i in range(4): A(f"buffer_store_dwordx4 v[{4+4*i}:{7+4*i}], v2, {R(WS_)}, s58 offen offset:{16*i}")
        if cfg.dbgwg >= 0:
            A(f"""s_cmp_lg_u32 s2, {cfg.dbgwg}
            s_cbranch_scc1 END
            s_cmp_lg_u32 s{sW}, 7
            s_cbranch_scc1 END
            s_load_dwordx2 s[4:5], s[0:1], 96
            s_waitcnt lgkmcnt(0)""")
            srd(A, SM_, 4, 5, 256)
            for i in range(1, 15): A(f"v_subrev_u32 v{4+i}, s70, v{4+i}")
            for i in range(4): A(f"buffer_store_dwordx4 v[{4+4*i}:{7+4*i}], v2, {R(SM_)}, 0 offen offset:{16*i}")
    A("s_endpgm")
    A(f"""HELPER:
    s_cmp_eq_u32 s{sM}, 28
    s_cbranch_scc1 LEADER
    s_sub_u32 s58, s{sM}, 29
    s_lshl_b32 s58, s58, 3
    s_add_u32 s58, s58, s{sW}
    s_mul_i32 s58, s58, {66*1024}
    s_mov_b32 s59, 0
    HSTREAM:""")
    for i in range(11):
        A(f"buffer_load_dwordx4 v[24:27], v2, {R(W2_)}, s58 offen\ns_add_u32 s58, s58, 1024")
    A(f"""s_waitcnt vmcnt(11)
    s_add_u32 s59, s59, 1
    s_cmp_lt_u32 s59, 6
    s_cbranch_scc1 HSTREAM
    s_waitcnt vmcnt(0)
    s_endpgm
    LEADER:
    s_cmp_lg_u32 s{sW}, 0
    s_cbranch_scc1 END
    v_lshlrev_b32 v4, 6, v1
    s_lshl_b32 s58, s{sXG}, 14
    s_add_u32 s58, s58, {F_2}
    s_add_u32 s59, s58, {56*64}
    s_add_u32 s61, s58, {2*56*64}
    s_add_u32 s62, s58, {3*56*64}
    s_mov_b32 s60, 0
    s_mov_b32 exec_hi, 0x00ffffff
    LPOLL:
    buffer_load_dword v24, v4, {R(WS_)}, s58 offen sc1
    buffer_load_dword v25, v4, {R(WS_)}, s59 offen sc1
    buffer_load_dword v26, v4, {R(WS_)}, s61 offen sc1
    buffer_load_dword v27, v4, {R(WS_)}, s62 offen sc1
    s_waitcnt vmcnt(0)
    v_cmp_ne_u32 vcc, s{sTAG}, v24
    v_cmp_ne_u32 s[64:65], s{sTAG}, v25
    s_or_b64 vcc, vcc, s[64:65]
    v_cmp_ne_u32 s[64:65], s{sTAG}, v26
    s_or_b64 vcc, vcc, s[64:65]
    v_cmp_ne_u32 s[64:65], s{sTAG}, v27
    s_or_b64 vcc, vcc, s[64:65]
    s_cmp_eq_u64 vcc, 0
    s_cbranch_scc1 LGO
    s_add_u32 s60, s60, 1
    s_cmp_lt_u32 s60, {cfg.timeout}
    s_cbranch_scc1 LPOLL
    LGO:
    s_lshl_b32 s58, s{sXG}, 7
    s_add_u32 s58, s58, {F_GO}
    s_mov_b64 exec, 1
    buffer_store_dword v18, v6, {R(WS_)}, s58 offen {cfg.sc_go}
    s_cmp_lg_u32 s{sXG}, 0
    s_cbranch_scc1 END
    s_mov_b32 s58, {F_EP}
    buffer_store_dword v18, v6, {R(WS_)}, s58 offen sc1
    END:
    s_endpgm""")
    return A.text()

def build(cfg):
    hdr = open("sequential_preLN__ssm_conv_h3__mixer_channel_mlp__prompt.s.ref").read().split("; Override launch")[0]
    out = hdr + f"; @launch grid=(256,1,1) block=(512,1,1) lds={LDS_BYTES}\n"
    out += '.amdgcn_target "amdgcn-amd-amdhsa--gfx950"\n'
    out += kernel_header(NAME) + "CODE_BEG:\n" + gen(cfg) + "CODE_END:\n" + kernel_desc(NAME, 256)
    return out

if __name__ == "__main__":
    cfg = Cfg()
    path = sys.argv[1]
    for a in sys.argv[2:]:
        k, val = a.split("=")
        old = getattr(cfg, k)
        setattr(cfg, k, (val == "1") if isinstance(old, bool) else type(old)(val))
    open(path, "w").write(build(cfg))
```

```python
import sys
from asmlib import *

S, D, F = 2048, 448, 1792
NBX = S*D*2
WS_T, WS_H, WS_HID, WS_S, WS_F = 0, 0x400000, 0x600000, 0xD00000, 0xD10000
WS_AUG = 0xD08000 + 0x40000
F_EP, F_A, F_2, F_GO, F_3, F_XW = WS_F, WS_F+0x1000, WS_F+0x2000, WS_F+0x24000, WS_F+0x28000, WS_F+0x30000
WS_STAMP = 0xE00000
WS_BYTES = 0x1400000
WS_T2 = 0x1000000
DUAL = 0x800
DUAL3 = 0x4000
TAGK = 0x9E3779B9
CA, CAS = 0, 4160
XK, XKS = 33280, 4608
XX, SS, RED = 42496, 50688, 67072
HS, LS = 99840, 128512
BS = 1056
KT = 42496; VT = KT + 9*BS; XT = VT + 8*BS; OUT = XT + 8*BS
assert OUT % 16 == 0 and OUT + 16384 <= LS
NSL = 7
ST = 157184
FL = ST + 4096
HT, W2B = 0, 57344
LDS_BYTES = 163840
GC1 = -2.0*0.7978845608028654*1.4426950408889634
GC2 = GC1*0.044715
NAME = "sequential_preLN__ssm_conv_h3__mixer_channel_mlp__prompt_kernel"

class Cfg:
    stamp = False; stamps = 'all'
    sc_hid = "sc1"; kfast = 24
    pretouch = True; codewarm = True; stream = True
    n47 = 0; npre = 0; pool = 40; look = 13
    pf = 3; tr0 = 12; trstep = 3; trlat = 6; gspan = 14; fin0 = 2; finspan = 16
    f0pos = 0.3; p0pos = 0.02; nb0 = 10; p1 = 11
    timeout = 200000
    hidpt = False
    nbp = True
    p0iss = 50
    p1iss = 8
    lead = 2
    lead1 = 6
    rot = True
    lsp = 10
    loearly = True
    f1k = 4
    slp = 1
    cprio = True
    early = True
    tlb = False
    nr = 7
    nex = 8
    pollw = 7
    order = 'B'
    f0lat = 1
    sprio = True
    cyc = False
    dstep = 3
    d0 = 0
    prio = 0
    w2pre = False
    xall = True
    late = True
    extra = 12

sTAG = 3
K_, V_, X_, WS_, HK_, W1_, W2_, SM_, O_ = 16, 20, 24, 28, 32, 36, 40, 44, 48
sXG, sM, sW, sJ, sRT, sFS = 52, 53, 54, 55, 56, 57
sRHO, sFT, sSTG = 69, 68, 66

def srd(A, r, lo, hi, nbytes):
    A(f"""s_mov_b32 s{r}, s{lo}
    s_and_b32 s{r+1}, s{hi}, 0xffff
    s_mov_b32 s{r+2}, {nbytes}
    s_mov_b32 s{r+3}, 0x20000""")
def R(r): return f"s[{r}:{r+3}]"

def tr_pattern(A, dst0, dst1, lane, t0, t1, t2):
    A(f"""v_and_b32 v{t0}, 3, v{lane}
    v_bfe_u32 v{t1}, v{lane}, 2, 2
    v_lshrrev_b32 v{t2}, 5, v{lane}
    v_lshl_add_u32 v{t2}, v{t2}, 2, v{t1}
    v_lshlrev_b32 v{dst0}, 7, v{t2}
    v_lshrrev_b32 v{t1}, 1, v{t1}
    v_lshlrev_b32 v{t1}, 6, v{t1}
    v_add_u32 v{dst0}, v{dst0}, v{t1}
    v_bfe_u32 v{t1}, v{lane}, 4, 1
    v_lshl_add_u32 v{dst0}, v{t1}, 5, v{dst0}
    v_lshl_add_u32 v{dst0}, v{t0}, 3, v{dst0}
    v_xor_b32 v{dst1}, 64, v{dst0}""")

def dma_swz(A, dst, lane, t0, t1, rowstride, sh=6):
    A(f"""v_lshrrev_b32 v{t0}, 3, v{lane}
    v_mul_u32_u24 v{t0}, {rowstride}, v{t0}
    v_and_b32 v{t1}, 7, v{lane}
    v_lshlrev_b32 v{t1}, 4, v{t1}
    v_bfe_u32 v{dst}, v{lane}, 4, 1
    v_lshlrev_b32 v{dst}, {sh}, v{dst}
    v_xor_b32 v{t1}, v{t1}, v{dst}
    v_add_u32 v{dst}, v{t0}, v{t1}""")

def conv_body(A, lg, cset, vA, vB, acc, pool, lookahead=13, age=7, done=None):
    mf = []
    for i in range(4):
        prs = [(vv, c-vv, c) for c in cset for vv in range(c+1)]
        prs.sort(key=lambda t: (max(t[0], t[1]), t[2], t[0]))
        for vv, e, c in prs: mf.append((("A", i, vv), ("B", i, e), c))
    order = []
    for a, b, c in mf:
        for x in (a, b):
            if x not in order: order.append(x)
    last = {}
    for n, (a, b, c) in enumerate(mf): last[a] = n; last[b] = n
    lastc = {}
    for n, (a, b, c) in enumerate(mf): lastc[c] = n
    free = list(pool); reg = {}; tok = {}; nxt = 0; first = set(); hist = []; cur = [0]
    def issue(x):
        r = free.pop(0); reg[x] = r
        k, i, z = x
        if k == "A":
            lg.issue(); A(f"ds_read_b64 v[{r}:{r+1}], v{vA} offset:{64*i+512*z}")
            tok[x] = lg.issue(); A(f"ds_read_b64 v[{r+2}:{r+3}], v{vA} offset:{64*i+512*z+8}")
        else:
            tok[x] = lg.issue(); A(f"ds_read_b128 v[{r}:{r+3}], v{vB} offset:{512*z+64*(3-i)}")
        hist.append((tok[x], cur[0]))
    for n, (a, b, c) in enumerate(mf):
        cur[0] = n
        while a not in reg or b not in reg:
            issue(order[nxt]); nxt += 1
        k = 0
        while nxt < len(order) and free and lg.issued - lg.done + 2 <= lookahead and (k < 1 or n < 4):
            issue(order[nxt]); nxt += 1; k += 1
        need = max(tok[a], tok[b])
        if need > lg.done:
            lg.wait(max([need] + [t for (t, when) in hist if when <= n - age]))
        cin = v(acc[c], 4) if c in first else "0"
        first.add(c)
        A(f"v_mfma_f32_16x16x32_bf16 {v(acc[c],4)}, {v(reg[a],4)}, {v(reg[b],4)}, {cin}")
        for x in (a, b):
            if last[x] == n: free.append(reg[x])
        if done:
            for cc in cset:
                if lastc[cc] + 8 == n: done(cc)
    if done:
        rem = [cc for cc in cset if lastc[cc] + 8 >= len(mf)]
        A("s_nop 7")
        for cc in rem: done(cc)

def rowstat(A):
    for i in range(4): A(f"v_dot2_f32_bf16 v28, v{16+i}, s15, v28\nv_dot2_f32_bf16 v29, v{16+i}, v{16+i}, v29")
    A("s_nop 2")
    for dpp in ("quad_perm:[1,0,3,2] row_mask:0xf", "quad_perm:[2,3,0,1] row_mask:0xf", "row_half_mirror row_mask:0xf", "row_mirror row_mask:0xf",
                "row_bcast:15 row_mask:0xa", "row_bcast:31 row_mask:0xc"):
        A(f"""v_add_f32_dpp v28, v28, v28 {dpp} bank_mask:0xf
        v_add_f32_dpp v29, v29, v29 {dpp} bank_mask:0xf
        s_nop 0""")
    A(f"""v_mul_f32 v28, {fhex(1/448)}, v28
    v_mul_f32 v29, {fhex(1/448)}, v29
    v_fma_f32 v29, -v28, v28, v29
    v_max_f32 v29, 0, v29
    v_add_f32 v29, {fhex(1e-5)}, v29
    v_rsq_f32 v16, v29
    v_mov_b32 v18, s{sTAG}
    v_mov_b32 v19, s{sTAG}
    v_mul_f32 v17, -v28, v16
    s_lshl_b32 s63, s63, 4
    s_add_u32 s63, s63, {WS_S}
    s_mov_b32 exec_lo, 0
    s_mov_b32 exec_hi, 0x80000000
    buffer_store_dwordx4 v[16:19], v6, {R(WS_)}, s63 offen sc1
    s_mov_b64 exec, -1""")

def gen(cfg):
    A = Asm(); vm = Cnt(A, "vmcnt", 63); lg = Cnt(A, "lgkmcnt", 15)
    def stamp(n, drain=False):
        if cfg.stamp and (cfg.stamps == 'all' or str(n) in cfg.stamps.split(',')):
            if drain: lg.waitall()
            assert lg.issued == lg.done
            A(f"{'s_memtime' if cfg.cyc else 's_memrealtime'} s[98:99]\ns_waitcnt lgkmcnt(0)\ns_mov_b32 s{70+n}, s98")
    def poll(voff, soff, vdat=15, dual=0):
        L = A.label("POLL"); Dn = A.label("POLLD")
        A(f"""s_mov_b32 s60, 0
        {L}:
        buffer_load_dword v{vdat}, v{voff}, {R(WS_)}, {soff} offen sc1
        s_waitcnt vmcnt(0)
        v_cmp_ne_u32 vcc, s{sTAG}, v{vdat}
        s_cbranch_vccz {Dn}
        s_add_u32 s60, s60, 1
        s_cmp_lt_u32 s60, {cfg.kfast}
        s_cbranch_scc1 {L}
        s_xor_b32 {soff}, {soff}, {dual}
        s_cmp_lt_u32 s60, {cfg.timeout}
        s_cbranch_scc1 {L}
        {Dn}:""")
    def sync_vm(): vm.restore((vm.issued, vm.issued))
    def poll_issue(voff, soff, vdat):
        A(f"buffer_load_dword v{vdat}, v{voff}, {R(WS_)}, {soff} offen sc1")
        return vm.issue()
    def poll_check(tok, voff, soff, vdat):
        vm.wait(tok)
        Dn = A.label("PCK")
        A(f"v_cmp_ne_u32 vcc, s{sTAG}, v{vdat}\ns_cbranch_vccz {Dn}")
        poll(voff, soff, vdat=vdat, dual=DUAL3)
        A(f"{Dn}:")
    def mlp_ids():
        A(f"""s_mul_i32 s{sRT}, s{sM}, 37
        s_lshr_b32 s{sRT}, s{sRT}, 8
        s_mul_i32 s{sFS}, s{sRT}, 7
        s_sub_u32 s{sFS}, s{sM}, s{sFS}
        s_lshr_b32 s{sRHO}, s{sW}, 1
        s_add_u32 s{sRHO}, s{sRHO}, s{sRT}
        s_and_b32 s{sRHO}, s{sRHO}, 3
        s_lshl_b32 s60, s{sXG}, 2
        s_add_u32 s{sRT}, s{sRT}, s60
        s_lshl_b32 s{sFT}, s{sFS}, 3
        s_add_u32 s{sFT}, s{sFT}, s{sW}""")
    def bias_loads(b1=False):
        if b1:
            srd(A, SM_, 6, 7, F*2)
            A(f"""v_and_b32 v4, 31, v1
            s_lshl_b32 s60, s{sFT}, 6
            v_lshl_add_u32 v31, v4, 1, s60
            buffer_load_ushort v31, v31, {R(SM_)}, 0 offen""")
        srd(A, SM_, 10, 11, D*2)
        A(f"buffer_load_dwordx4 v[24:27], v2, {R(SM_)}, 0 offen")
        vm.issue(1)
    A(f"""s_cmp_ge_u32 s2, 256
    s_cbranch_scc1 END
    s_load_dwordx4 s[4:7], s[0:1], 0
    s_load_dwordx4 s[8:11], s[0:1], 16
    s_load_dwordx2 s[12:13], s[0:1], 104
    s_load_dwordx4 s[64:67], s[0:1], 32""")
    if cfg.stamp:
        A("s_memrealtime s[70:71]\ns_memtime s[100:101]")
    A(f"""s_and_b32 s{sXG}, s2, 7
    s_lshr_b32 s{sM}, s2, 3
    v_and_b32 v1, 63, v0
    v_lshrrev_b32 v4, 6, v0
    v_lshlrev_b32 v2, 4, v1
    v_readfirstlane_b32 s{sW}, v4""")
    dma_swz(A, 3, 1, 5, 6, 896, sh=4)
    A(f"""s_mul_i32 s58, s{sM}, {64*896}
    s_lshl_b32 s59, s{sXG}, 7
    s_add_u32 s58, s58, s59
    v_add_u32 v3, s58, v3
    s_mul_i32 s61, s{sW}, {8*896}
    s_mul_i32 s62, s{sW}, {BS}
    s_lshl_b32 s{sJ}, s{sXG}, 5
    s_add_u32 s{sJ}, s{sJ}, s{sM}
    s_mov_b32 s59, {F_EP}
    s_cmp_eq_u32 s{sXG}, 7
    s_waitcnt lgkmcnt(0)
    s_load_dword s{sTAG}, s[12:13], s59""")
    if cfg.stamp:
        for i in range(1, 28): A(f"s_mov_b32 s{70+i}, 0")
    srd(A, X_, 4, 5, NBX); srd(A, K_, 6, 7, NBX); srd(A, V_, 8, 9, NBX)
    A(f"""s_cmp_eq_u32 s{sXG}, 7
    s_cbranch_scc1 XSTAT
    s_cmp_lg_u32 s{sW}, 0
    s_cbranch_scc1 P1_NH
    v_add_u32 v4, {(-7168)&0xffffffff}, v3
    s_mov_b32 m0, {KT}
    s_nop 0
    buffer_load_dwordx4 v4, {R(K_)}, 0 offen lds
    P1_NH:
    s_add_u32 m0, s62, {KT+BS}
    s_nop 0
    buffer_load_dwordx4 v3, {R(K_)}, s61 offen lds
    s_add_u32 m0, s62, {VT}
    s_nop 0
    buffer_load_dwordx4 v3, {R(V_)}, s61 offen lds
    s_add_u32 m0, s62, {XT}""")
    srd(A, SM_, 10, 11, D*8)
    A(f"""buffer_load_dwordx4 v3, {R(X_)}, s61 offen lds
    v_bfe_u32 v4, v1, 4, 1
    v_and_b32 v5, 3, v1
    v_lshl_add_u32 v8, v4, 2, v5
    s_lshl_b32 s59, s{sW}, 3
    v_add_u32 v8, s59, v8
    s_lshl_b32 s59, s{sXG}, 6
    v_add_lshl_u32 v4, v8, s59, 3
    buffer_load_dwordx2 v[10:11], v4, {R(SM_)}, 0 offen""")
    vm.issue(3); tKVX = vm.issue()
    srd(A, WS_, 12, 13, WS_BYTES)
    if cfg.late and cfg.order == 'B': A("s_waitcnt vmcnt(3)")
    def pretouch():
        A(f"""s_lshl_b32 s60, s{sJ}, 14
        s_lshl_b32 s62, s{sW}, 11
        s_add_u32 s60, s60, s62
        buffer_load_dwordx4 v[24:27], v2, {R(WS_)}, s60 offen
        buffer_load_dwordx4 v[24:27], v2, {R(WS_)}, s60 offen offset:1024
        s_lshl_b32 s60, s{sXG}, 7
        s_add_u32 s60, s60, {F_A}
        buffer_load_dword v24, v1, {R(WS_)}, s60 offen sc1""")
        vm.issue(3)
    if cfg.pretouch and cfg.order == 'B': pretouch()
    A(f"""s_lshr_b32 s58, s{sW}, 2
    s_and_b32 s59, s{sW}, 3
    s_lshl_b32 s68, s{sJ}, 1
    s_add_u32 s68, s68, s58
    s_lshl_b32 s68, s68, 12
    s_add_u32 s64, s64, s68
    s_addc_u32 s65, s65, 0""")
    srd(A, HK_, 64, 65, 4096)
    A(f"""s_lshl_b32 s59, s59, 10
    v_add_u32 v4, s59, v2
    v_add_u32 v5, -8, v4
    buffer_load_dwordx2 v[112:113], v5, {R(HK_)}, 0 offen
    buffer_load_dwordx4 v[114:117], v4, {R(HK_)}, 0 offen
    s_mul_i32 s58, s58, {4*CAS}
    s_add_u32 s58, s58, {CA+32}
    v_add_u32 v13, s58, v4
    s_lshl_b32 s68, s{sJ}, 2
    s_load_dword s14, s[66:67], s68
    s_load_dwordx4 s[4:7], s[0:1], 56
    s_load_dwordx4 s[8:11], s[0:1], 72
    s_load_dwordx2 s[64:65], s[0:1], 88""")
    vm.issue(2)
    A(f"""s_lshl_b32 s63, s2, 3
    s_add_u32 s63, s63, s{sW}
    s_mul_i32 s68, s63, 896
    v_add_u32 v7, s68, v2
    v_cmp_gt_u32 vcc, 56, v1
    v_mov_b32 v9, 0x80000000
    s_mov_b32 s15, 0x3f803f80
    v_cndmask_b32 v7, v9, v7, vcc
    v_mov_b32 v28, 0
    v_mov_b32 v29, 0
    buffer_load_dwordx4 v[16:19], v7, {R(X_)}, 0 offen""")
    vm.issue()
    A(f"""v_lshrrev_b32 v4, 5, v1
    v_and_b32 v5, 3, v1
    v_lshl_add_u32 v6, v4, 2, v5
    v_mul_u32_u24 v20, {BS}, v6
    v_bfe_u32 v5, v1, 2, 2
    v_lshl_add_u32 v20, v5, 7, v20
    v_lshrrev_b32 v6, 1, v5
    v_xor_b32 v6, s{sW}, v6
    v_lshl_add_u32 v20, v6, 4, v20
    v_bfe_u32 v6, v1, 4, 1
    v_lshl_add_u32 v20, v6, 3, v20
    v_lshl_add_u32 v4, v4, 2, v5
    v_lshl_add_u32 v4, v8, 1, v4
    v_and_b32 v4, 7, v4
    v_lshlrev_b32 v4, 4, v4
    v_lshl_add_u32 v21, v8, 7, v4
    v_add_u32 v21, {OUT}, v21
    v_lshrrev_b32 v8, 3, v0
    v_and_b32 v5, 7, v0
    v_lshl_add_u32 v4, v8, 1, v5
    v_and_b32 v4, 7, v4
    v_lshlrev_b32 v4, 4, v4
    v_lshl_add_u32 v22, v8, 7, v4
    v_add_u32 v22, {OUT}, v22
    v_lshrrev_b32 v4, 1, v8
    v_lshlrev_b32 v4, 14, v4
    v_and_b32 v8, 1, v8
    v_lshl_add_u32 v4, v8, 12, v4
    v_lshl_add_u32 v4, v5, 4, v4
    s_lshl_b32 s58, s{sXG}, 19
    s_lshl_b32 s59, s{sM}, 7
    s_add_u32 s58, s58, s59
    v_add_u32 v23, s58, v4
    s_mov_b32 s58, 0xffff0000
    s_mov_b32 s59, 8192
    v_mov_b32 v6, 0
    v_and_b32 v4, 15, v1
    v_lshlrev_b32 v4, 2, v4
    v_add_u32 v4, {FL}, v4
    ds_write_b32 v4, v6""")
    mlp_ids()
    if cfg.pretouch and cfg.order == 'A':
        vm.wait(tKVX-3); pretouch()
    stamp(1)
    vm.wait(tKVX)
    A("s_waitcnt lgkmcnt(0)")
    bias_loads()
    A("s_barrier")
    stamp(2)
    for i, off in enumerate((KT+512, KT+BS, KT+BS+512, VT, VT+512)):
        A(f"ds_read_b64_tr_b16 v[{32+2*i}:{33+2*i}], v20 offset:{off}")
    A(f"""ds_read_b64_tr_b16 v[44:45], v20 offset:{XT}
    ds_read_b64_tr_b16 v[46:47], v20 offset:{XT+512}
    v_lshlrev_b32 v48, 16, v10
    v_and_b32 v49, s58, v10
    v_lshlrev_b32 v50, 16, v11
    v_and_b32 v51, s58, v11
    s_add_u32 s{sTAG}, s{sTAG}, {TAGK}
    s_waitcnt lgkmcnt(4)""")
    for i in range(-3, 8):
        src = 32 + (i+4)//2
        A(f"v_and_b32 v{55+i}, s58, v{src}" if (i+4) & 1 else f"v_lshlrev_b32 v{55+i}, 16, v{src}")
    A("s_waitcnt lgkmcnt(0)")
    A(f"ds_write_b128 v21, v[44:47] offset:8192")
    for t in range(8):
        A(f"v_and_b32 v{72+(t&1)}, s58, v{38+t//2}" if t & 1 else f"v_lshlrev_b32 v{72+(t&1)}, 16, v{38+t//2}")
        A(f"""v_mul_f32 v{64+t}, v{55+t}, v48
        v_fmac_f32 v{64+t}, v{54+t}, v49
        v_fmac_f32 v{64+t}, v{53+t}, v50
        v_fmac_f32 v{64+t}, v{52+t}, v51
        v_mul_f32 v{64+t}, v{64+t}, v{72+(t&1)}""")
    for i in range(4): A(f"v_cvt_pk_bf16_f32 v{76+i}, v{71-2*i}, v{70-2*i}")
    A(f"""ds_write_b128 v21, v[76:79]
    s_waitcnt lgkmcnt(0)
    s_barrier
    ds_read_b128 v[32:35], v22
    ds_read_b128 v[36:39], v22 offset:8192
    s_waitcnt lgkmcnt(1)
    buffer_store_dwordx4 v[32:35], v23, {R(WS_)}, 0 offen
    s_waitcnt lgkmcnt(0)
    buffer_store_dwordx4 v[36:39], v23, {R(WS_)}, s59 offen
    s_lshl_b32 s61, s{sXG}, 7
    s_add_u32 s61, s61, {F_A}
    s_lshl_b32 s62, s{sM}, 2
    s_add_u32 s62, s62, s61
    s_getreg_b32 s32, hwreg(HW_REG_XCC_ID, 0, 4)
    s_add_u32 s32, s32, s{sTAG}
    s_add_u32 s32, s32, 1
    v_mov_b32 v30, s32""")
    stamp(3)
    def mlp_setup(x7=False, zero=True):
        stg = f"""s_xor_b32 s58, s{sW}, 4
        s_mul_i32 s58, s58, {NSL*1024}
        s_add_u32 s{sSTG}, s58, {HS}"""
        srd(A, W1_, 4, 5, D*F*2); srd(A, W2_, 8, 9, D*F*2); srd(A, O_, 64, 65, NBX)
        A(f"""v_lshrrev_b32 v5, 2, v1
        v_mul_u32_u24 v5, 3584, v5
        v_and_b32 v7, 3, v1
        v_lshl_add_u32 v3, v7, 4, v5
        s_lshl_b32 s58, s{sFT}, 6
        v_add_u32 v3, s58, v3
        v_bfe_u32 v5, v1, 2, 2
        v_lshrrev_b32 v12, 5, v1
        v_lshl_add_u32 v12, v12, 2, v5
        v_lshlrev_b32 v12, 6, v12
        v_bfe_u32 v5, v1, 4, 1
        v_lshl_add_u32 v12, v5, 5, v12
        v_lshl_add_u32 v12, v7, 3, v12
        {stg}
        v_add_u32 v12, s{sSTG}, v12
        s_mov_b32 s15, 0x3f803f80""")
        pass
    def slot1(it):
        return ("s%d" % sSTG, (it % NSL)*1024, 12)
    def w1dma(it, sl=None):
        base, off, _ = sl if sl else slot1(it)
        if it % 7 == 0:
            A(f"""s_add_u32 s67, s{sRHO}, {it//7}
            s_and_b32 s67, s67, 3
            s_mul_i32 s67, s67, {7*57344}
            s_add_u32 m0, {base}, {off}
            s_nop 0""")
        else:
            A(f"s_add_u32 m0, {base}, {off}\ns_add_u32 s67, s67, 57344")
        A(f"buffer_load_dwordx4 v3, {R(W1_)}, s67 offen lds")
        return vm.issue()
    if cfg.early:
        A(f"""s_cmp_lt_u32 s{sW}, 4
        s_cbranch_scc1 EA_NO
        s_cmp_ge_u32 s{sM}, 28
        s_cbranch_scc1 EA_NO
        s_nop 0""")
        mlp_setup(zero=False)
        for it in range(NSL): w1dma(it)
        A(f"s_waitcnt vmcnt({NSL})\ns_branch EA_J\nEA_NO:\ns_waitcnt vmcnt(0)\nEA_J:")
    else:
        A("s_waitcnt vmcnt(0)")
    A(f"""s_barrier
    s_cmp_lg_u32 s{sW}, 0
    s_cbranch_scc1 P1_NF
    s_mov_b64 exec, 1
    buffer_store_dword v30, v6, {R(WS_)}, s62 offen
    s_mov_b64 exec, -1
    P1_NF:""")
    sync_vm()
    rowstat(A)
    A(f"""v_alignbit_b32 v120, v113, v112, 16
    v_alignbit_b32 v121, v114, v113, 16
    v_alignbit_b32 v122, v115, v114, 16
    v_alignbit_b32 v123, v116, v115, 16
    v_mov_b32 v124, v113
    v_mov_b32 v125, v114
    v_mov_b32 v126, v115
    v_mov_b32 v127, v116
    v_alignbit_b32 v128, v114, v113, 16
    v_alignbit_b32 v129, v115, v114, 16
    v_alignbit_b32 v130, v116, v115, 16
    v_alignbit_b32 v131, v117, v116, 16
    ds_write_b128 v13, v[120:123]
    ds_write_b128 v13, v[124:127] offset:{CAS}
    ds_write_b128 v13, v[128:131] offset:{2*CAS}
    ds_write_b128 v13, v[114:117] offset:{3*CAS}""")
    A(f"""s_lshl_b32 s58, s{sJ}, 14
    s_lshl_b32 s59, s{sW}, 10
    s_add_u32 s2, s58, s59
    s_lshr_b32 s63, s{sW}, 2
    s_mul_i32 s63, s63, {XKS-4096}
    s_add_u32 s63, s63, s59
    s_add_u32 m0, s63, {XK+480}
    v_and_b32 v10, 15, v1
    v_lshrrev_b32 v11, 4, v1
    s_bfe_u32 s58, s{sW}, 0x10001
    s_and_b32 s63, s{sW}, 1
    v_mov_b32 v19, 1
    s_cmp_ge_u32 s{sW}, 4
    s_cbranch_scc1 SET_HI
    v_mov_b32 v8, 0
    v_mov_b32 v9, 0
    s_mul_i32 s60, s58, {XKS}
    v_lshl_add_u32 v7, v1, 3, s60
    s_mov_b32 exec_hi, 0x0fffffff
    ds_write_b64 v7, v[8:9] offset:{XK}
    v_lshrrev_b32 v7, 2, v1
    v_mul_u32_u24 v7, {CAS}, v7
    v_and_b32 v4, 3, v1
    v_lshl_add_u32 v7, v4, 3, v7
    s_mov_b32 exec_hi, 0
    ds_write_b64 v7, v[8:9] offset:{CA}
    s_mov_b64 exec, -1
    v_and_b32 v4, 3, v10
    v_mul_u32_u24 v4, {CAS}, v4
    v_and_b32 v13, 12, v10
    v_lshlrev_b32 v13, 1, v13
    v_lshl_add_u32 v13, v11, 4, v13
    s_lshl_b32 s59, s63, 8
    s_mul_i32 s62, s58, {4*CAS}
    s_add_u32 s62, s62, s59
    s_add_u32 s62, s62, {CA+8}
    v_add3_u32 v14, v4, v13, s62
    v_lshlrev_b32 v20, 5, v10
    v_lshlrev_b32 v4, 4, v11
    v_sub_u32 v20, v20, v4
    s_add_u32 s62, s60, {XK+496-192}
    s_sub_u32 s62, s62, s59
    v_add_u32 v20, s62, v20
    s_lshl_b32 s62, s{sW}, 13
    s_add_u32 s62, s62, {RED}
    v_add_u32 v24, s62, v2
    s_lshl_b32 s62, s{sW}, 2
    s_add_u32 s62, s62, {FL+16}
    v_mov_b32 v21, s62
    v_mov_b32 v22, {FL+48}
    s_waitcnt lgkmcnt(0)
    s_barrier""")
    stamp(4)
    A(f"""buffer_load_dwordx4 v2, {R(WS_)}, s2 offen sc1 lds
    ds_read_b32 v15, v22
    s_waitcnt lgkmcnt(0)
    v_cmp_ne_u32 vcc, 0, v15
    s_cbranch_vccnz SLOW1
    LO_BACK:
    s_waitcnt vmcnt(0)
    s_barrier""")
    W1R = 144
    NR = cfg.nr
    def w1cons(it, sl):
        r = W1R + 4*it; _, so, va = sl
        lg.issue(); A(f"ds_read_b64_tr_b16 v[{r}:{r+1}], v{va} offset:{so}")
        t = lg.issue(); A(f"ds_read_b64_tr_b16 v[{r+2}:{r+3}], v{va} offset:{so+512}")
        return t
    def w1segs():
        for q in range(1, 4):
            A(f"""s_add_u32 s60, s{sRHO}, {q}
            s_and_b32 s60, s60, 3
            s_mul_i32 s{3+q}, s60, {7*57344}""")
        A(f"v_add_u32 v26, {57344-1024}, v3\nv_add_u32 v27, {2*(57344-1024)}, v3\nv_add_u32 v28, {3*(57344-1024)}, v3")
    def w1grp(its, sls):
        it0 = its[0]; base, off, _ = sls[0]
        A(f"s_add_u32 m0, {base}, {off}\ns_add_u32 s67, s{3+it0//7}, {(it0 % 7)*57344}")
        toks = []
        for k, it in enumerate(its):
            assert it//7 == it0//7 and sls[k][0] == base and sls[k][1] == off + 1024*k and k < 4
            A(f"buffer_load_dwordx4 v{[3, 26, 27, 28][k]}, {R(W1_)}, s67 offen offset:{1024*k} lds")
            toks.append(vm.issue())
        return toks
    def w1issue(pairs, tk):
        i = 0
        while i < len(pairs):
            g = [pairs[i]]; i += 1
            while i < len(pairs) and len(g) < 4 and pairs[i][0]//7 == g[0][0]//7 and pairs[i][1][0] == g[0][1][0] and pairs[i][1][1] == g[0][1][1] + 1024*len(g):
                g.append(pairs[i]); i += 1
            for (it, _), t in zip(g, w1grp([x[0] for x in g], [x[1] for x in g])): tk[it] = t
    def w1ring(exoff, mid=None):
        base = lambda k: ("s%d" % sSTG, k*1024, 12)
        sl = {it: base(it) for it in range(NSL)}
        tk = {it: 0 for it in range(NSL)}
        for e in range(8): sl[7+e] = ("s59", exoff(e), 13)
        for k in range(7): sl[15+k] = base(k)
        for k in range(6): sl[22+k] = base(k)
        w1segs()
        w1issue([(it, sl[it]) for it in range(7, 15)], tk)
        if mid: mid()
        def cons(its):
            vm.wait(tk[its[-1]])
            t = None
            for it in its: t = w1cons(it, sl[it])
            return t
        t = cons([0, 1, 2, 3]); t2 = cons([4, 5, 6])
        lg.wait(t); w1issue([(it, sl[it]) for it in range(15, 19)], tk)
        lg.wait(t2); w1issue([(it, sl[it]) for it in range(19, 22)], tk)
        cons([7, 8, 9, 10]); cons([11, 12, 13, 14])
        t = cons([15, 16, 17]); lg.wait(t); w1issue([(it, sl[it]) for it in range(22, 25)], tk)
        t = cons([18, 19, 20]); lg.wait(t); w1issue([(it, sl[it]) for it in range(25, 28)], tk)
        assert NR == 7
        return tk, sl
    def common_setup():
        dma_swz(A, 24, 1, 4, 5, 896)
        dma_swz(A, 14, 1, 4, 5, 128)
        tr_pattern(A, 4, 5, 1, 6, 7, 8)
        for sgi in range(1, 4):
            A(f"""s_add_u32 s60, s{sRHO}, {sgi}
            s_and_b32 s60, s60, 3
            s_cselect_b32 s60, 1, -3
            s_mul_i32 s{7+sgi}, s60, {7*2048}""")
        A(f"""s_mul_i32 s58, s{sW}, 7168
        v_add_u32 v9, s58, v4
        v_add_u32 v10, s58, v5
        s_mul_i32 s58, s{sW}, 12288
        s_add_u32 s58, s58, {W2B}
        v_add_u32 v7, s58, v4
        v_add_u32 v8, s58, v5
        s_mul_i32 s60, s{sRHO}, {7*2048}
        v_add_u32 v4, s60, v4
        v_add_u32 v5, s60, v5
        v_mov_b32 v23, 0""")
    def spin(vaddr, vexp, vdat):
        L = A.label("SPIN"); Dn = A.label("SPIND")
        A(f"""s_mov_b32 s60, 0
        {L}:
        ds_read_b32 v{vdat}, v{vaddr}
        s_waitcnt lgkmcnt(0)
        v_cmp_ne_u32 vcc, v{vdat}, v{vexp}
        s_cbranch_vccz {Dn}
        {"s_sleep %d" % cfg.slp if cfg.slp else ""}
        s_add_u32 s60, s60, 1
        s_cmp_lt_u32 s60, {cfg.timeout*8}
        s_cbranch_scc1 {L}
        {Dn}:""")
    def b1load():
        srd(A, SM_, 6, 7, F*2)
        A(f"""v_and_b32 v4, 31, v1
        s_lshl_b32 s58, s{sFT}, 6
        v_lshl_add_u32 v6, v4, 1, s58
        buffer_load_ushort v17, v6, {R(SM_)}, 0 offen""")
        vm.issue()
    stamp(5)
    if cfg.cprio: A("s_setprio 3")
    acc = {c: 32+4*c for c in range(8)}
    def redw(c):
        lg.issue(); A(f"ds_write_b128 v24, v[{32+4*c}:{35+4*c}] offset:{1024*c}")
    conv_body(A, lg, list(range(8)), 14, 20, acc, [64+4*i for i in range(cfg.pool)], cfg.look, done=redw)
    lg.waitall()
    A("ds_write_b32 v21, v19")
    if cfg.cprio: A("s_setprio 0")
    stamp(15)
    A(f"""s_cmp_ge_u32 s{sM}, 28
    s_cbranch_scc1 END""")
    mlp_setup()
    A(f"""v_xor_b32 v22, 4, v21
    v_mov_b32 v21, {FL+32}
    s_bfe_u32 s58, s{sW}, 0x10001
    s_mul_i32 s58, s58, {4*CAS}
    s_and_b32 s59, s{sW}, 1
    s_lshl_b32 s59, s59, 13
    s_add_u32 s59, s59, s58
    s_sub_u32 s58, s59, s{sSTG}
    v_add_u32 v13, s58, v12""")
    sync_vm()
    if cfg.loearly:
        spin(22, 19, 15)
        def mid():
            common_setup(); spin(21, 19, 15); stamp(7)
        tkr, slr = w1ring(lambda e: e*1024, mid)
    else:
        common_setup(); spin(21, 19, 15); stamp(7)
        tkr, slr = w1ring(lambda e: e*1024)
    st_lo = vm.state()
    A("s_branch RING_J")
    A(f"""SET_HI:
    v_and_b32 v22, 31, v1
    v_lshlrev_b32 v22, 2, v22
    s_cmp_lg_u32 s{sW}, {cfg.pollw}
    s_cbranch_scc1 H1_W""")
    A(f"""s_mov_b32 s60, 0
    H1_P:
    buffer_load_dword v15, v22, {R(WS_)}, s61 offen sc1
    s_waitcnt vmcnt(0)
    v_cmp_ne_u32 vcc, s32, v15
    s_cbranch_vccz H1_W
    s_add_u32 s60, s60, 1
    s_cmp_lt_u32 s60, {cfg.kfast}
    s_cbranch_scc1 H1_P
    v_mov_b32 v15, {FL+48}
    ds_write_b32 v15, v19
    H1_W:
    v_mov_b32 v21, {FL+48}
    s_and_b32 s60, s{sW}, 3
    s_lshl_b32 s59, s60, 11
    s_lshl_b32 s62, s{sJ}, 14
    s_add_u32 s62, s62, s59
    s_add_u32 s62, s62, 8192
    s_waitcnt lgkmcnt(0)
    s_barrier""")
    stamp(4)
    A(f"""buffer_load_dwordx4 v2, {R(WS_)}, s2 offen sc1 lds
    ds_read_b32 v15, v21
    s_waitcnt lgkmcnt(0)
    v_cmp_ne_u32 vcc, 0, v15
    s_cbranch_vccnz SLOW1
    HI_BACK:
    s_add_u32 m0, s59, {XX}
    s_and_b32 s60, s{sW}, 3
    buffer_load_dwordx4 v2, {R(WS_)}, s62 offen sc1 lds
    buffer_load_dwordx4 v2, {R(WS_)}, s62 offen offset:1024 sc1 lds
    s_lshl_b32 s2, s60, 13
    s_add_u32 s61, s2, {WS_S}
    s_add_u32 s62, s61, 4096
    s_waitcnt vmcnt(2)
    s_barrier""")
    def sloads():
        for i in range(8):
            A(f"buffer_load_dwordx4 v[{32+4*i}:{35+4*i}], v2, {R(WS_)}, s{61 if i < 4 else 62} offen offset:{1024*(i&3)} sc1")
    sloads()
    def partner():
        A(f"""v_add_u32 v4, -256, v3
        s_xor_b32 s62, s{sRHO}, 2
        s_mul_i32 s62, s62, {7*57344}""")
        for it in range(NSL):
            A(f"""s_add_u32 m0, s{sSTG}, {it*1024 + 4*NSL*1024}
            s_nop 0
            buffer_load_dwordx4 v4, {R(W1_)}, s62 offen lds
            s_add_u32 s62, s62, 57344""")
    mlp_setup()
    A(f"""s_mov_b32 s60, 0
    s_cmp_ge_u32 s{sM}, 28
    s_cbranch_scc1 S_W0""")
    if cfg.early: partner()
    else:
        for it in range(NSL): w1dma(it)
    A(f"s_waitcnt vmcnt({NSL})\ns_branch S_CHK\nS_RETRY:\ns_add_u32 s62, s61, 4096")
    sloads()
    A("S_W0:\ns_waitcnt vmcnt(0)\nS_CHK:")
    A(f"v_cmp_ne_u32 vcc, s{sTAG}, v34")
    for i in range(1, 8):
        A(f"v_cmp_ne_u32 s[62:63], s{sTAG}, v{34+4*i}\ns_or_b64 vcc, vcc, s[62:63]")
    A(f"""s_cmp_eq_u64 vcc, 0
    s_cbranch_scc1 S_OK
    s_add_u32 s60, s60, 1
    s_cmp_lt_u32 s60, {cfg.timeout}
    s_cbranch_scc1 S_RETRY
    S_OK:
    s_lshr_b32 s2, s2, 1
    s_add_u32 s2, s2, {SS}
    v_lshl_add_u32 v17, v1, 3, s2""")
    for i in range(8):
        A(f"ds_write_b64 v17, v[{32+4*i}:{33+4*i}] offset:{512*i}")
    A(f"""s_bfe_u32 s58, s{sW}, 0x10001
    s_and_b32 s63, s{sW}, 1
    v_mov_b32 v30, {FL}
    v_mov_b32 v23, 4
    s_waitcnt lgkmcnt(0)
    s_mov_b64 exec, 1
    ds_add_u32 v30, v19
    s_mov_b64 exec, -1
    s_lshl_b32 s62, s58, 14
    s_lshl_b32 s59, s63, 12
    s_add_u32 s62, s62, s59
    s_add_u32 s2, s62, {RED}
    v_add_u32 v25, s2, v2
    v_lshlrev_b32 v4, 5, v10
    v_lshl_add_u32 v4, v11, 3, v4
    s_lshl_b32 s59, s63, 11
    s_mul_i32 s60, s58, {XKS}
    s_add_u32 s62, s60, s59
    s_add_u32 s62, s62, {XK+480}
    v_xor_b32 v5, 8, v4
    v_add_u32 v26, s62, v5
    s_lshl_b32 s62, s58, 12
    s_add_u32 s62, s62, s59
    s_add_u32 s62, s62, {XX}
    v_add_u32 v27, s62, v4
    s_lshl_b32 s62, s59, 2
    s_add_u32 s62, s62, {SS}
    v_lshl_add_u32 v28, v4, 2, s62
    v_lshrrev_b32 v4, 2, v10
    v_and_b32 v5, 1, v11
    v_lshl_add_u32 v4, v5, 2, v4
    s_lshl_b32 s62, s63, 4
    v_add_u32 v4, s62, v4
    v_mul_u32_u24 v4, 57344, v4
    v_and_b32 v5, 3, v10
    v_lshlrev_b32 v5, 5, v5
    v_lshrrev_b32 v7, 1, v11
    v_lshl_add_u32 v5, v7, 4, v5
    s_lshl_b32 s62, s{sJ}, 1
    s_add_u32 s62, s62, s58
    s_lshl_b32 s62, s62, 7
    s_add_u32 s62, s62, {WS_H}
    v_add3_u32 v29, v4, v5, s62
    s_lshl_b32 s62, s14, 16
    s_and_b32 s14, s14, 0xffff0000
    s_cmp_eq_u32 s58, 0
    s_cselect_b32 s14, s62, s14
    s_mov_b32 s62, 0xffff0000""")
    spin(30, 23, 15)
    stamp(15)
    A(f"""s_lshl_b32 s58, s58, 3
    s_add_u32 s58, s58, {FL+16}
    v_and_b32 v30, 1, v1
    v_lshl_add_u32 v30, v30, 2, s58
    v_mov_b32 v21, {FL+32}""")
    def unp(dst, reg, hi): return f"v_and_b32 v{dst}, s62, v{reg}" if hi else f"v_lshlrev_b32 v{dst}, 16, v{reg}"
    tke = {}
    for c in range(4):
        if c == 3: lg.wait(tke[0])
        lg.issue(); A(f"ds_read_b64 v[{80+2*c}:{81+2*c}], v26 offset:{512*c}")
        lg.issue(); A(f"ds_read_b64 v[{88+2*c}:{89+2*c}], v27 offset:{512*c}")
        lg.issue(); A(f"ds_read_b128 v[{96+8*c}:{99+8*c}], v28 offset:{2048*c}")
        tke[c] = lg.issue(); A(f"ds_read_b128 v[{100+8*c}:{103+8*c}], v28 offset:{2048*c+16}")
    for c in range(4):
        lg.wait(tke[c])
        kv, xx, sr = 80+2*c, 88+2*c, 96+8*c
        src = {3: (kv, 0), 2: (kv, 1), 1: (kv+1, 0), 0: (kv+1, 1)}
        for r in range(4):
            q, c0 = 32+4*c+r, 48+4*c+r
            A(unp(132, *src[r])); A(unp(c0, xx+(r>>1), r&1))
            A(f"v_mul_f32 v132, s14, v132")
            A(f"v_fma_f32 v{q}, v{c0}, v{sr+2*r}, v{sr+2*r+1}")
            A(f"v_fmac_f32 v{c0}, v132, v{q}")
    if not cfg.early:
        A(f"s_cmp_ge_u32 s{sM}, 28\ns_cbranch_scc1 HI_NP")
        partner()
        A("HI_NP:")
    A(f"""s_mov_b32 s58, {8*57344}
    s_lshl_b32 s61, s{sJ}, 6
    s_add_u32 s61, s61, {F_2}
    v_mov_b32 v22, {FL+4}
    v_lshlrev_b32 v20, 14, v1""")
    spin(30, 19, 15)
    for c in range(4):
        lg.issue(); A(f"ds_read_b128 v[{64+8*c}:{67+8*c}], v25 offset:{1024*c}")
        tke[c] = lg.issue(); A(f"ds_read_b128 v[{68+8*c}:{71+8*c}], v25 offset:{8192+1024*c}")
    for c in range(4):
        lg.wait(tke[c])
        y = 64+8*c
        for r in range(4): A(f"v_add_f32 v{y+r}, v{y+r}, v{y+4+r}")
        for r in range(4): A(f"v_fmac_f32 v{48+4*c+r}, v{y+r}, v{32+4*c+r}")
        o = 96 + 2*c
        A(f"v_cvt_pk_bf16_f32 v{o}, v{48+4*c}, v{49+4*c}\nv_cvt_pk_bf16_f32 v{o+1}, v{50+4*c}, v{51+4*c}")
        if c & 1:
            A(f"""s_nop 1
            v_permlane16_swap_b32 v{o-2}, v{o}
            v_permlane16_swap_b32 v{o-1}, v{o+1}
            buffer_store_dwordx4 v[{o-2}:{o+1}], v29, {R(WS_)}, {'s58' if c == 3 else '0'} offen sc1""")
    stamp(6)
    common_setup()
    A(f"""s_waitcnt vmcnt(0)
    s_mov_b64 exec, 1
    ds_add_rtn_u32 v15, v22, v19
    s_waitcnt lgkmcnt(0)
    v_cmp_ne_u32 vcc, 3, v15
    s_mov_b64 exec, 0xff
    s_mov_b32 s59, s2
    s_cbranch_vccnz HI_NF
    buffer_store_dword v18, v20, {R(WS_)}, s61 offen sc1
    ds_write_b32 v21, v19
    HI_NF:
    s_mov_b64 exec, -1""")
    A(f"""s_cmp_ge_u32 s{sM}, 28
    s_cbranch_scc1 HELPER
    s_sub_u32 s58, s59, s{sSTG}
    v_add_u32 v13, s58, v12""")
    spin(21, 19, 15)
    stamp(7)
    sync_vm()
    tkr, slr = w1ring(lambda e: (e & 3)*1024 + (e >> 2)*8192)
    assert vm.issued - vm.done == st_lo[0] - st_lo[1]
    A("RING_J:")
    A(f"""s_lshl_b32 s58, s{sFS}, 7
    v_add_u32 v3, s58, v24
    v_add_u32 v6, {7168-1024}, v3
    s_mul_i32 s67, s{sW}, {224*896}
    s_mul_i32 s59, s{sW}, 7168
    s_mul_i32 s{sSTG}, s{sW}, 12288
    s_add_u32 s{sSTG}, s{sSTG}, {W2B}
    s_mul_i32 s58, s{sRT}, 57344
    s_add_u32 s58, s58, s59
    s_add_u32 s58, s58, {WS_H}
    s_add_u32 s63, s58, 4096
    s_lshl_b32 s61, s{sXG}, 7
    s_add_u32 s61, s61, {F_GO}
    v_mov_b32 v24, 0
    v_mov_b32 v25, 0
    v_mov_b32 v26, 0
    v_mov_b32 v27, 0
    s_lshl_b32 s2, s{sFT}, 10
    s_add_u32 s2, s2, {WS_AUG}""")
    PS = [4, 5, 6, 7, 11, 12, 13]
    A(f"""s_and_b32 s60, s{sRT}, 3
    s_lshl_b32 s60, s60, 1
    s_add_u32 s60, s60, s{sFS}
    s_mov_b32 s14, s67""")
    if not cfg.rot: A("s_mov_b32 s60, 0")
    for p in range(7):
        A(f"""s_cmp_ge_u32 s60, 7
        s_cselect_b32 s{PS[p]}, 7, 0
        s_sub_u32 s60, s60, s{PS[p]}
        s_lshl_b32 s{PS[p]}, s60, 12
        s_add_u32 s60, s60, 1""")
    lg.waitall()
    W2A, W2Bq, NA = 80, 144, 8
    def w2reg(ks): return W2A + 8*ks if ks < NA else W2Bq + 8*(ks-NA)
    cnt2 = [0]
    def w2dma(off):
        ks = cnt2[0]; cnt2[0] += 1
        if ks % 2 == 0:
            A(f"s_mul_i32 s67, s{PS[ks//2]}, 7\ns_add_u32 m0, s{sSTG}, {off}\ns_add_u32 s67, s67, s14")
        else:
            A(f"s_add_u32 m0, s{sSTG}, {off}\ns_add_u32 s67, s67, {16*896}")
        A(f"""buffer_load_dwordx4 v3, {R(W2_)}, s67 offen lds
        buffer_load_dwordx4 v6, {R(W2_)}, s67 offen offset:1024 lds""")
        vm.issue(); return vm.issue()
    def w2tr(ks, off):
        r = w2reg(ks); t = None
        for dt in range(2):
            for j in range(2):
                t = lg.issue(); A(f"ds_read_b64_tr_b16 v[{r+4*dt+2*j}:{r+4*dt+2*j+1}], v{7+dt} offset:{off+1024*j}")
        return t
    NP = 0
    stamp(8)
    A(f"""s_cmp_lg_u32 s{sW}, 7
    s_cbranch_scc1 H2_W""")
    poll(23, "s61", dual=DUAL)
    A(f"H2_W:\ns_mov_b32 m0, s59\ns_barrier")
    stamp(9)
    tH_ = []
    for i in range(4):
        A(f"buffer_load_dwordx4 v14, {R(WS_)}, s58 offen offset:{1024*i} sc1 lds"); tH_.append(vm.issue())
    A(f"s_add_u32 m0, s59, 4096\ns_nop 0")
    for i in range(3):
        A(f"buffer_load_dwordx4 v14, {R(WS_)}, s63 offen offset:{1024*i} sc1 lds"); tH_.append(vm.issue())
    A(f"buffer_load_dwordx4 v[16:19], v2, {R(WS_)}, s2 offen sc1")
    tAUG = vm.issue()
    if cfg.pretouch:
        A(f"""s_lshl_b32 s60, s{sRT}, 9
        s_add_u32 s60, s60, {F_3}
        v_lshrrev_b32 v28, 1, v2
        buffer_load_dword v28, v28, {R(WS_)}, s60 offen sc1""")
        vm.issue()
    if cfg.hidpt:
        A(f"""s_mul_i32 s60, s{sRT}, 229376
        s_lshl_b32 s62, s{sFT}, 12
        s_add_u32 s60, s60, s62
        s_add_u32 s60, s60, {WS_HID}""")
        for i in range(4):
            A(f"buffer_load_dwordx4 v[28:31], v2, {R(WS_)}, s60 offen offset:{1024*i}"); vm.issue()
    vm.wait(tkr[24])
    for it in range(21, 25): w1cons(it, slr[it])
    vm.wait(tkr[27])
    for it in range(25, 28): w1cons(it, slr[it])
    A("s_mov_b32 s62, 0xffff0000")
    pend = None
    def sdot(i):
        for t in range(2):
            for d in range(2):
                r = 32 + 4*i + 2*t + d
                A(f"v_dot2_f32_bf16 v{24+t}, v{r}, s15, v{24+t}\nv_dot2_f32_bf16 v{26+t}, v{r}, v{r}, v{26+t}")
    for i in range(7):
        vm.wait(tH_[i])
        lg.issue(); A(f"ds_read_b64_tr_b16 v[{32+4*i}:{33+4*i}], v9 offset:{HT+1024*i}")
        t = lg.issue(); A(f"ds_read_b64_tr_b16 v[{34+4*i}:{35+4*i}], v10 offset:{HT+1024*i}")
        if pend is not None:
            lg.wait(pend[1]); sdot(pend[0])
        pend = (i, t)
    tk2 = {}
    rest = list(range(NP, 14))
    slot = {ks: 2048*(i % 6) for i, ks in enumerate(rest)}
    if cfg.w2pre:
        for ks in rest[:6]: tk2[ks] = w2dma(slot[ks])
    lg.wait(pend[1]); sdot(pend[0])
    A(f"""s_lshl_b32 s58, s{sW}, 9
    s_add_u32 s58, s58, {ST}
    v_lshl_add_u32 v9, v1, 3, s58
    v_permlane32_swap_b32 v24, v25
    v_permlane32_swap_b32 v26, v27
    v_lshlrev_b32 v15, 3, v1
    v_add_u32 v15, {ST}, v15
    v_add_f32 v24, v24, v25
    v_add_f32 v25, v26, v27
    ds_write_b64 v9, v[24:25]
    s_waitcnt lgkmcnt(0)
    s_barrier""")
    stamp(10)
    ACC0, ACC1 = 32, 48
    BB = [64, 68, 72, 76]
    PF = cfg.pf
    def bread(it, areg, dst):
        bo = HT + (it % 7)*2048
        lg.issue(); A(f"ds_read_b64_tr_b16 v[{dst}:{dst+1}], v{areg} offset:{bo}")
        t = lg.issue(); A(f"ds_read_b64_tr_b16 v[{dst+2}:{dst+3}], v{areg} offset:{bo+1024}")
        return t
    ev = {}
    def at(g, f): ev.setdefault(g, []).append(f)
    trtok = {}
    def augchk():
        vm.wait(tAUG)
        A(f"""v_cmp_ne_u32 vcc, s{sTAG}, v19
        s_cbranch_vccz AUG_OK
        s_mov_b32 s60, 0
        AUG_RETRY:
        buffer_load_dwordx4 v[16:19], v2, {R(WS_)}, s2 offen sc1
        s_waitcnt vmcnt(0)
        v_cmp_ne_u32 vcc, s{sTAG}, v19
        s_cbranch_vccz AUG_OK
        s_add_u32 s60, s60, 1
        s_cmp_lt_u32 s60, {cfg.timeout}
        s_cbranch_scc1 AUG_RETRY
        AUG_OK:
        v_mov_b32 v19, 0""")
    at(20, augchk)
    for i, ks in enumerate(rest[:6]):
        if not cfg.w2pre: at(cfg.d0 + cfg.dstep*i, lambda ks=ks: tk2.__setitem__(ks, w2dma(slot[ks])))
    gtr = {}; gd = {}; post = []
    for i, ks in enumerate(rest):
        if i < 6: gd[ks] = -10 if cfg.w2pre else cfg.d0 + cfg.dstep*i
        else:
            prev = rest[i-6]
            gd[ks] = max(gtr[prev] + 2, cfg.d0 + cfg.dstep*(i - (6 if cfg.w2pre else 0)))
            def refill(prev=prev, nk=ks):
                lg.wait(trtok[prev]); tk2[nk] = w2dma(slot[nk])
            assert gd[ks] <= 55, (ks, gd[ks])
            at(gd[ks], refill)
        g = max(gd[ks] + cfg.trlat, cfg.tr0 + i)
        if ks >= NA: g = max(g, 28 + 2*(ks-NA) + 3)
        gtr[ks] = g
        def tr(ks=ks):
            vm.wait(tk2[ks]); trtok[ks] = w2tr(ks, slot[ks])
        if g <= 55: at(g, tr)
        else: post.append(tr)
    def cost(op):
        if callable(op): return 0
        return 2 if op.startswith(("v_exp", "v_rcp", "v_rsq")) else 1
    def run(op):
        if callable(op): op()
        else: A(op)
    hold = {}
    def finrd():
        for q in range(8):
            hold[q] = lg.issue(); A(f"ds_read_b64 v[{48+2*q}:{49+2*q}], v15 offset:{512*q}")
    fin = [finrd, lambda: lg.wait(hold[7])]
    for st_ in (2, 4, 8):
        for b in range(48, 64, 2*st_):
            fin += [f"v_add_f32 v{b}, v{b}, v{b+st_}", f"v_add_f32 v{b+1}, v{b+1}, v{b+st_+1}"]
    fin += [f"v_mul_f32 v48, {fhex(-1/448)}, v48", f"v_mul_f32 v49, {fhex(1/448)}, v49",
            "v_fma_f32 v49, -v48, v48, v49", "v_max_f32 v49, 0, v49", f"v_add_f32 v50, {fhex(1e-5)}, v49",
            "v_rsq_f32 v50, v50", "v_cvt_pk_bf16_f32 v20, v48, v48", "v_mul_f32 v51, v50, v50", "v_mul_f32 v51, v51, v49",
            f"v_add_f32 v51, {fhex(1e-5)}, v51", "v_rsq_f32 v51, v51", "v_lshlrev_b32 v52, 16, v20",
            "v_mul_f32 v50, v50, v51",
            "v_sub_f32 v52, v48, v52",
            "v_rcp_f32 v13, v50",
            f"v_mul_f32 v9, {fhex(GC1)}, v50", "v_mul_f32 v51, v50, v50",
            "v_cvt_pk_bf16_f32 v21, v52, v13", f"v_mul_f32 v51, {fhex(0.044715)}, v51", "v_and_b32 v52, s62, v21",
            "v_mul_f32 v11, v51, v9", "v_sub_f32 v52, v13, v52", "v_mov_b32 v10, v9", "v_mov_b32 v14, v13",
            "v_cvt_pk_bf16_f32 v22, v52, 0", "v_mov_b32 v12, v11",
            "v_permlane32_swap_b32 v9, v10", "v_permlane32_swap_b32 v13, v14", "v_permlane32_swap_b32 v11, v12"]
    def gelu_ops(acc, t, tset):
        k1, k2, sg = 9+t, 11+t, 13+t
        ops = []
        for g in range(4):
            T = 24 + 4*(g & 1); a = acc + 4*g
            for i in range(4): ops.append(f"v_mul_f32 v{T+i}, v{a+i}, v{a+i}")
            for i in range(4): ops.append(f"v_fma_f32 v{T+i}, v{T+i}, v{k2}, v{k1}")
            for i in range(4): ops.append(f"v_mul_f32 v{T+i}, v{T+i}, v{a+i}")
            for i in range(4): ops.append(f"v_exp_f32 v{T+i}, v{T+i}")
            for i in range(4): ops.append(f"v_fma_f32 v{T+i}, v{T+i}, v{sg}, v{sg}")
            for i in range(4): ops.append(f"v_rcp_f32 v{T+i}, v{T+i}")
            for i in range(4): ops.append(f"v_mul_f32 v{a+i}, v{a+i}, v{T+i}")
            o = acc + 8*(g >> 1) + 2*(g & 1)
            ops.append(f"v_cvt_pk_bf16_f32 v{o}, v{a}, v{a+1}")
            ops.append(f"v_cvt_pk_bf16_f32 v{o+1}, v{a+2}, v{a+3}")
            if g & 1:
                def st(g=g, o=o):
                    tset.append(vm.issue()); A(f"buffer_store_dwordx4 v[{o-2}:{o+1}], v2, {R(WS_)}, s61 offen offset:{2048*(g>>1)+1024*t} {cfg.sc_hid}")
                ops.append(st)
        return ops
    setup = [f"s_mul_i32 s61, s{sRT}, 229376", f"s_lshl_b32 s58, s{sFT}, 12", f"s_add_u32 s64, s61, {WS_HID}", "s_add_u32 s61, s64, s58",
             f"s_mul_i32 s59, s{sW}, {14*2048}", "s_add_u32 s64, s64, s59",
             f"s_lshl_b32 s58, s{sRT}, 9", f"s_add_u32 s63, s58, {F_3}", f"s_lshl_b32 s65, s{sFT}, 2", "s_add_u32 s65, s65, s63"]
    for o in setup: run(o) if False else None
    st0t = []
    def mloop(tile, acc, areg, fill, f0, fspan, g0):
        tB = {}
        tot = sum(cost(o) for o in fill); fi = 0; spent = 0
        def rd(it):
            if it % 7 == 0 and it > 0: A(f"v_add_u32 v{areg}, s{7+it//7}, v{areg}")
            tB[it] = bread(it, areg, BB[it % 4])
        for it in range(PF): rd(it)
        for it in range(28):
            if it % 2 == 0: lg.wait(tB[min(27, it+1)])
            A(f"v_mfma_f32_32x32x16_bf16 {v(acc,16)}, {v(W1R+4*it,4)}, {v(BB[it%4],4)}, {v(acc,16) if it else '0'}")
            if it + PF < 28: rd(it + PF)
            for f in ev.get(g0+it, []): f()
            if it >= f0:
                target = tot*(it+1-f0)/fspan
                while fi < len(fill) and spent < target:
                    run(fill[fi]); spent += cost(fill[fi]); fi += 1
        assert fi == len(fill)
        A(f"v_mfma_f32_32x32x16_bf16 {v(acc,16)}, v[16:19], v[20:23], {v(acc,16)}")
    assert PF == 3
    if cfg.sprio: A("s_setprio 3")
    if cfg.prio:
        A(f"s_cmp_lt_u32 s{sW}, 4\ns_cbranch_scc{0 if cfg.prio == 1 else 1} NOPRIO\ns_setprio 1\nNOPRIO:")
    mloop(0, ACC0, 4, fin + setup, cfg.fin0, cfg.finspan, 0)
    stamp(16, True)
    swp = ["v_permlane32_swap_b32 v20, v20", "v_permlane32_swap_b32 v21, v21", "v_permlane32_swap_b32 v22, v22"]
    def flag3(sreg):
        A(f"""s_mov_b64 exec, 1
        buffer_store_dword v15, v23, {R(WS_)}, {sreg} offen
        s_add_u32 {sreg}, {sreg}, {DUAL3}
        buffer_store_dword v15, v23, {R(WS_)}, {sreg} offen sc1
        s_mov_b64 exec, -1""")
        vm.issue(2)
    ptk = {}
    def p0i():
        A(f"s_mul_i32 s59, s{sW}, 28\nv_min_u32 v4, 6, v1\nv_lshl_add_u32 v4, v4, 2, s59")
        if cfg.nbp: ptk[0] = poll_issue(4, "s63", 0)
    at(cfg.p0iss, p0i)
    f0in = cfg.gspan + cfg.f0lat <= 27
    if f0in:
        def f0():
            vm.wait(st0t[-1]); flag3("s65")
            if cfg.sprio: A("s_setprio 2")
        at(28 + cfg.gspan + cfg.f0lat, f0)
    mloop(1, ACC1, 5, [f"v_mov_b32 v15, s{sTAG}"] + swp + gelu_ops(ACC0, 0, st0t), 2, cfg.gspan-2, 28)
    A(f"""s_andn2_b32 s2, s65, {DUAL3}
    s_add_u32 s2, s2, 256
    s_nop 6""")
    A("s_setprio 1" if cfg.sprio else "s_nop 0")
    stamp(11, True)
    BL = [192+4*i for i in range(16)]
    tH = {}; hs = {"cur": -1}
    def hload(t, ks):
        n = 14*t + ks; r = BL[n % 16]
        if hs["cur"] != ks//2:
            A(f"s_add_u32 s67, s64, s{PS[ks//2]}"); hs["cur"] = ks//2
        tH[n] = vm.issue(); A(f"buffer_load_dwordx4 v[{r}:{r+3}], v2, {R(WS_)}, s67 offen offset:{2048*(ks&1)+1024*t} sc1")
    st1t = []
    g1 = gelu_ops(ACC1, 1, st1t)
    for k_, f_ in enumerate(post): g1.insert(20 + 12*k_, f_)
    nl = [0]
    fpos = int(len(g1)*cfg.f0pos); ppos = int(len(g1)*cfg.p0pos)
    for i, o in enumerate(g1):
        if i == fpos and not f0in:
            vm.wait(st0t[-1]); flag3("s65")
        if i == ppos and cfg.nb0 > 0:
            stamp(19, True)
            if cfg.nbp: poll_check(ptk[0], 4, "s63", 0)
            else: poll(4, "s63", vdat=0, dual=DUAL3); sync_vm()
            stamp(17, True)
        if cfg.nb0 > 0 and i >= ppos and (i - ppos) % cfg.lsp == 0 and nl[0] < cfg.nb0:
            hload(0, nl[0]); nl[0] += 1
        run(o)
    if cfg.sprio: A("s_setprio 0")
    stamp(18, True)
    if cfg.nb0 > 0:
        NI = min(14, nl[0] + cfg.lead)
        for ks in range(nl[0], NI): hload(0, ks)
        nl[0] = NI
        if cfg.f1k < 0: vm.wait(st1t[-1]); flag3("s2")
    else:
        vm.waitall(); flag3("s2")
        poll(4, "s63", vdat=0, dual=DUAL3); sync_vm()
        for ks in range(14): hload(0, ks)
        nl[0] = 14
    lg.waitall()
    A(f"s_andn2_b32 s63, s63, {DUAL3}\ns_add_u32 s63, s63, 256\nv_mov_b32 v6, v4\ns_lshl_b32 s59, s{sW}, 6\nv_add_u32 v0, s59, v1")
    stamp(12)
    G2A = {(0, 0): 32, (1, 0): 64, (0, 1): 48, (1, 1): 16}
    A(f"""s_lshl_b32 s61, s{sFS}, 3
    s_sub_u32 s58, {W2B}, s{sSTG}
    s_add_u32 s61, s61, s{sW}
    s_lshl_b32 s61, s61, 10
    s_sub_u32 s61, s61, s{sSTG}
    v_add_u32 v10, s61, v7
    v_add_u32 v11, s61, v8
    ds_read_b64_tr_b16 v[24:25], v10 offset:{HT}
    ds_read_b64_tr_b16 v[26:27], v11 offset:{HT}
    v_and_b32 v7, 31, v1
    v_lshrrev_b32 v8, 5, v1
    v_lshlrev_b32 v8, 3, v8
    v_lshl_add_u32 v9, v7, 4, v8
    v_add_u32 v9, s{sSTG}, v9
    v_lshl_add_u32 v8, v7, 7, v8
    v_add_u32 v8, s{sSTG}, v8
    v_and_b32 v7, 7, v1
    s_waitcnt lgkmcnt(0)
    ds_write_b64 v9, v[24:25] offset:8192
    ds_write_b64 v9, v[26:27] offset:{8192+512}""")
    lg.issue(2)
    tb2 = {}
    A(f"""v_and_b32 v14, 15, v0
    s_lshl_b32 s59, s{sFS}, 7
    v_lshl_add_u32 v3, v14, 3, s59""")
    tb2[0] = vm.issue(); A(f"buffer_load_dwordx2 v[4:5], v3, {R(SM_)}, 0 offen")
    nxt1 = [0]
    def more1(ks_done, maxn=99):
        k = 0
        while nxt1[0] < 14 and 14 + nxt1[0] - 16 < ks_done and k < maxn:
            hload(1, nxt1[0]); nxt1[0] += 1; k += 1
    for ks in range(14):
        if ks == cfg.f1k and cfg.nb0 > 0:
            vm.wait(st1t[-1]); flag3("s2")
        if ks == cfg.p1iss and cfg.nbp and cfg.p1 < 14: ptk[1] = poll_issue(6, "s63", 12)
        if ks == cfg.p1:
            stamp(21, True)
            if cfg.nbp: poll_check(ptk[1], 6, "s63", 12)
            else: poll(6, "s63", vdat=12, dual=DUAL3); sync_vm()
            stamp(22, True)
        if ks >= cfg.p1: more1(ks, cfg.lead1 if ks == cfg.p1 else 2)
        if nl[0] < 14: hload(0, nl[0]); nl[0] += 1
        assert nl[0] == 14 or ks < cfg.p1
        vm.wait(tH[ks])
        for dt in range(2):
            a = G2A[dt, 0]
            A(f"v_mfma_f32_32x32x16_bf16 {v(a,16)}, {v(w2reg(ks)+4*dt,4)}, {v(BL[ks%16],4)}, {v(a,16) if ks else '0'}")
    if cfg.p1 >= 14:
        poll(6, "s63", vdat=12, dual=DUAL3); sync_vm()
    more1(14, cfg.lead1 if cfg.p1 >= 14 else 2)
    stamp(13, True)
    def pwrite(t, regs):
        ops = []
        for dt in range(2):
            for a in range(4):
                r = G2A[dt, t]+4*a; pc = 4*dt + a
                if t == 0: ops += [f"v_xor_b32 v12, {pc}, v7", f"v_lshl_add_u32 v{80+pc}, v12, 4, v8"]
                ops += [f"v_cvt_pk_bf16_f32 v{r}, v{r}, v{r+1}", f"v_cvt_pk_bf16_f32 v{r+1}, v{r+2}, v{r+3}"]
                def w(r=r, pc=pc): lg.issue(); A(f"ds_write_b64 v{80+pc}, v[{r}:{r+1}] offset:{4096*t}")
                ops.append(w)
        return ops
    rdaddr = [f"v_lshrrev_b32 v13, 4, v0", "v_bfe_u32 v14, v0, 1, 3", "v_and_b32 v15, 7, v13", "v_xor_b32 v15, v15, v14",
              "v_lshlrev_b32 v10, 7, v13", "v_lshl_add_u32 v10, v15, 4, v10", "v_and_b32 v15, 1, v0", "v_lshlrev_b32 v15, 3, v15",
              f"v_add3_u32 v10, v10, v15, s58", "v_mul_u32_u24 v14, 12288, v14", "v_lshl_add_u32 v11, v13, 4, v15", f"v_add3_u32 v11, v11, v14, s58",
              "v_add_u32 v9, 49152, v10",
              f"s_lshl_b32 s59, s{sRT}, 6", "v_add_u32 v13, s59, v13", "v_mul_u32_u24 v13, 896, v13", "v_add_u32 v13, v13, v3"]
    def reduce_ops(t, RB, AC, dot):
        tk_ = {}
        def bar():
            lg.waitall(); A("s_barrier")
            for i in range(8):
                tk_[i] = lg.issue(); A(f"ds_read_b64 v[{RB+2*i}:{RB+2*i+1}], v{10 if i < 4 else 9} offset:{12288*(i&3)+4096*t}")
            tk_[8] = lg.issue(); A(f"ds_read_b64 v[70:71], v11 offset:{8192+512*t}")
        ops = [bar, lambda: vm.wait(tb2[0])]
        ops += [f"v_lshlrev_b32 v{AC}, 16, v4", f"v_and_b32 v{AC+1}, s62, v4", f"v_lshlrev_b32 v{AC+2}, 16, v5", f"v_and_b32 v{AC+3}, s62, v5"]
        for i in range(9):
            if i % 3 == 0: ops.append(lambda i=i: lg.wait(tk_[i+2]))
            for d in range(2):
                r = RB+2*i+d if i < 8 else 70+d
                if dot:
                    ops += [f"v_dot2_f32_bf16 v{AC+2*d}, v{r}, s60, v{AC+2*d}", f"v_dot2_f32_bf16 v{AC+2*d+1}, v{r}, s61, v{AC+2*d+1}"]
                else:
                    ops += [f"v_lshlrev_b32 v{AC+4}, 16, v{r}", f"v_and_b32 v{r}, s62, v{r}", f"v_add_f32 v{AC+2*d}, v{AC+2*d}, v{AC+4}", f"v_add_f32 v{AC+2*d+1}, v{AC+2*d+1}, v{r}"]
        if dot: ops.append("s_nop 2")
        ops += [f"v_cvt_pk_bf16_f32 v{AC}, v{AC}, v{AC+1}", f"v_cvt_pk_bf16_f32 v{AC+1}, v{AC+2}, v{AC+3}"]
        def st():
            vm.issue(); A(f"buffer_store_dwordx2 v[{AC}:{AC+1}], v13, {R(O_)}, s59 offen")
        ops += [f"s_mov_b32 s59, {32*896*t}", st]
        return ops
    fill = [f"s_mov_b32 s58, {W2B}"] + rdaddr + pwrite(0, None) + reduce_ops(0, 32, 64, False)
    tot = sum(cost(o) for o in fill); fi = 0; spent = 0
    for ks in range(14):
        more1(14+ks, 2)
        vm.wait(tH[14+ks])
        for dt in range(2):
            a = G2A[dt, 1]
            A(f"v_mfma_f32_32x32x16_bf16 {v(a,16)}, {v(w2reg(ks)+4*dt,4)}, {v(BL[(14+ks)%16],4)}, {v(a,16) if ks else '0'}")
            target = tot*(2*ks+dt+1)/27
            while fi < len(fill) and spent < target:
                run(fill[fi]); spent += cost(fill[fi]); fi += 1
    assert fi == len(fill)
    stamp(14, True)
    A("s_mov_b32 s60, 0x3f80\ns_mov_b32 s61, 0x3f800000\ns_nop 7")
    for o in pwrite(1, None) + reduce_ops(1, 32, 64, True): run(o)
    if cfg.stamp:
        A("""s_waitcnt vmcnt(0)
        s_memrealtime s[98:99]
        s_memtime s[58:59]
        s_waitcnt lgkmcnt(0)
        s_mov_b32 s97, s98
        s_sub_u32 s58, s58, s100
        v_mov_b32 v32, s58""")
        for i in range(28): A(f"v_mov_b32 v{4+i}, s{70+i}")
        A(f"""s_lshl_b32 s58, s{sM}, 3
        s_add_u32 s58, s58, s{sXG}
        s_lshl_b32 s58, s58, 3
        s_add_u32 s58, s58, s{sW}
        s_lshl_b32 s58, s58, 7
        s_add_u32 s58, s58, {WS_STAMP}
        v_mov_b32 v2, 0
        s_mov_b64 exec, 1""")
        for i in range(8): A(f"buffer_store_dwordx4 v[{4+4*i}:{7+4*i}], v2, {R(WS_)}, s58 offen offset:{16*i}")
    A("s_endpgm")
    A(f"""SLOW1:
    s_mov_b32 s33, {WS_T2}
    s_mov_b32 s34, {WS_T2+8192}
    buffer_store_dwordx4 v[32:35], v23, {R(WS_)}, s33 offen sc1
    buffer_store_dwordx4 v[36:39], v23, {R(WS_)}, s34 offen sc1
    v_mov_b32 v4, {FL+52}
    s_waitcnt vmcnt(0)
    s_barrier
    s_cmp_lg_u32 s{sW}, {cfg.pollw}
    s_cbranch_scc1 SLOW1_W
    s_lshl_b32 s33, s{sM}, 2
    s_add_u32 s33, s33, s61
    s_mov_b64 exec, 1
    buffer_store_dword v18, v6, {R(WS_)}, s33 offen offset:{DUAL} sc1
    s_mov_b64 exec, -1
    s_mov_b32 s60, 0
    SLOW1_P:
    buffer_load_dword v15, v22, {R(WS_)}, s61 offen sc1
    buffer_load_dword v5, v22, {R(WS_)}, s61 offen offset:{DUAL} sc1
    s_waitcnt vmcnt(0)
    v_mov_b32 v7, 0
    v_cmp_ne_u32 vcc, s32, v15
    s_cbranch_vccz SLOW1_D
    v_mov_b32 v7, {WS_T2}
    v_cmp_ne_u32 vcc, s{sTAG}, v5
    s_cbranch_vccz SLOW1_D
    s_sleep 4
    s_add_u32 s60, s60, 1
    s_cmp_lt_u32 s60, {cfg.timeout}
    s_cbranch_scc1 SLOW1_P
    SLOW1_D:
    ds_write_b32 v4, v7
    s_waitcnt lgkmcnt(0)
    SLOW1_W:
    s_barrier
    ds_read_b32 v7, v4
    s_waitcnt lgkmcnt(0)
    v_readfirstlane_b32 s33, v7
    s_add_u32 s2, s2, s33
    s_nop 3
    buffer_load_dwordx4 v2, {R(WS_)}, s2 offen sc1 lds
    s_cmp_lt_u32 s{sW}, 4
    s_cbranch_scc1 LO_BACK
    s_add_u32 s62, s62, s33
    s_branch HI_BACK""")
    A(f"""XSTAT:
    s_lshl_b32 s63, s2, 3
    s_add_u32 s63, s63, s{sW}
    s_mul_i32 s68, s63, 896
    v_add_u32 v7, s68, v2
    v_cmp_gt_u32 vcc, 56, v1
    v_mov_b32 v9, 0x80000000
    s_mov_b32 s15, 0x3f803f80
    v_cndmask_b32 v7, v9, v7, vcc
    v_mov_b32 v28, 0
    v_mov_b32 v29, 0
    buffer_load_dwordx4 v[16:19], v7, {R(X_)}, 0 offen""")
    srd(A, WS_, 12, 13, WS_BYTES)
    A(f"""s_load_dwordx4 s[4:7], s[0:1], 56
    s_load_dwordx4 s[8:11], s[0:1], 72
    s_load_dwordx2 s[64:65], s[0:1], 88
    v_mov_b32 v6, 0
    s_waitcnt vmcnt(0) lgkmcnt(0)
    s_add_u32 s{sTAG}, s{sTAG}, {TAGK}""")
    mlp_ids(); bias_loads(True)
    rowstat(A)
    mlp_setup(True)
    A(f"""s_cmp_ge_u32 s{sM}, 28
    s_cbranch_scc1 HELPER""")
    for it in range(NSL): w1dma(it)
    A(f"s_lshl_b32 s59, s{sW}, 13\ns_waitcnt vmcnt(0)")
    common_setup()
    A("RING7:")
    sync_vm()
    A(f"s_sub_u32 s58, s59, s{sSTG}\nv_add_u32 v13, s58, v12")
    tk7, sl7 = w1ring(lambda e: e*1024)
    A(f"s_cmp_ge_u32 s{sM}, 7\ns_cbranch_scc1 RING_J\ns_waitcnt vmcnt(0)\nv_mov_b32 v20, 0")
    sync_vm()
    for it in range(21, 28): w1cons(it, sl7[it])
    lg.waitall()
    for i in range(112): A(f"v_dot2_f32_bf16 v20, v{W1R+i}, s15, v20")
    A(f"""s_nop 2
    v_mov_b32 v19, v20
    v_lshlrev_b32 v17, 16, v31
    v_cmp_gt_u32 vcc, 32, v1
    v_permlane32_swap_b32 v20, v19
    s_lshl_b32 s2, s{sFT}, 10
    s_add_u32 s2, s2, {WS_AUG}
    v_add_f32 v16, v20, v19
    v_cvt_pk_bf16_f32 v19, v16, v17
    v_lshlrev_b32 v20, 16, v19
    v_sub_f32 v20, v16, v20
    v_cvt_pk_bf16_f32 v16, v16, v20
    v_lshrrev_b32 v18, 16, v17
    v_cndmask_b32 v16, 0, v16, vcc
    v_cndmask_b32 v17, 0, v19, vcc
    v_cndmask_b32 v18, 0, v18, vcc
    v_mov_b32 v19, s{sTAG}
    buffer_store_dwordx4 v[16:19], v2, {R(WS_)}, s2 offen sc1
    s_branch RING_J""")
    A(f"""HELPER:
    v_mov_b32 v6, 0
    s_cmp_lt_u32 s{sW}, 4
    s_cbranch_scc1 END
    s_cmp_eq_u32 s{sM}, 28
    s_cbranch_scc1 LEADER""")
    if cfg.stream:
        A(f"""s_sub_u32 s61, s{sM}, 29
        s_lshl_b32 s61, s61, 2
        s_and_b32 s59, s{sW}, 3
        s_add_u32 s61, s61, s59
        HSTREAM:
        s_lshr_b32 s58, s61, 3
        s_mul_i32 s58, s58, {16*896}
        s_and_b32 s59, s61, 7
        s_mul_i32 s59, s59, {224*896}
        s_add_u32 s58, s58, s59""")
        for i in range(14):
            A(f"buffer_load_dwordx4 v[24:27], v2, {R(W2_)}, s58 offen\ns_add_u32 s58, s58, 1024")
        A(f"""s_waitcnt vmcnt(14)
        s_add_u32 s61, s61, 12
        s_cmp_lt_u32 s61, 112
        s_cbranch_scc1 HSTREAM""")
    A(f"""s_endpgm
    LEADER:
    s_cmp_lg_u32 s{sW}, 4
    s_cbranch_scc1 END
    v_lshlrev_b32 v4, 6, v1
    s_lshl_b32 s58, s{sXG}, 14
    s_add_u32 s58, s58, {F_2}
    s_add_u32 s59, s58, {56*64}
    s_add_u32 s61, s58, {2*56*64}
    s_add_u32 s62, s58, {3*56*64}
    s_mov_b32 s60, 0
    s_mov_b32 exec_hi, 0x00ffffff
    LPOLL:
    buffer_load_dword v24, v4, {R(WS_)}, s58 offen sc1
    buffer_load_dword v25, v4, {R(WS_)}, s59 offen sc1
    buffer_load_dword v26, v4, {R(WS_)}, s61 offen sc1
    buffer_load_dword v27, v4, {R(WS_)}, s62 offen sc1
    s_waitcnt vmcnt(0)
    v_cmp_ne_u32 vcc, s{sTAG}, v24
    v_cmp_ne_u32 s[64:65], s{sTAG}, v25
    s_or_b64 vcc, vcc, s[64:65]
    v_cmp_ne_u32 s[64:65], s{sTAG}, v26
    s_or_b64 vcc, vcc, s[64:65]
    v_cmp_ne_u32 s[64:65], s{sTAG}, v27
    s_or_b64 vcc, vcc, s[64:65]
    s_cmp_eq_u64 vcc, 0
    s_cbranch_scc1 LGO
    s_add_u32 s60, s60, 1
    s_cmp_lt_u32 s60, {cfg.timeout}
    s_cbranch_scc1 LPOLL
    LGO:
    s_lshl_b32 s58, s{sXG}, 7
    s_add_u32 s58, s58, {F_GO}
    s_mov_b64 exec, 1
    buffer_store_dword v18, v6, {R(WS_)}, s58 offen
    buffer_store_dword v18, v6, {R(WS_)}, s58 offen offset:{DUAL} sc1
    s_cmp_lg_u32 s{sXG}, 0
    s_cbranch_scc1 END
    s_mov_b32 s58, {F_EP}
    buffer_store_dword v18, v6, {R(WS_)}, s58 offen sc1
    END:
    s_endpgm""")
    return A.text()

def build(cfg):
    hdr = open("sequential_preLN__ssm_conv_h3__mixer_channel_mlp__prompt.s.ref").read().split("; Override launch")[0]
    out = hdr + f"; @launch grid=(256,1,1) block=(512,1,1) lds={LDS_BYTES}\n"
    out += '.amdgcn_target "amdgcn-amd-amdhsa--gfx950"\n'
    out += kernel_header(NAME) + "CODE_BEG:\n" + gen(cfg) + "CODE_END:\n" + kernel_desc(NAME, 256)
    return out

if __name__ == "__main__":
    cfg = Cfg()
    path = sys.argv[1]
    for a in sys.argv[2:]:
        k, val = a.split("=")
        old = getattr(cfg, k)
        setattr(cfg, k, (val == "1") if isinstance(old, bool) else type(old)(val))
    open(path, "w").write(build(cfg))
```

```python
import sys
from asmlib import *

S, D, F = 2048, 448, 1792
NBX = S*D*2
WS_T, WS_H, WS_HID, WS_S, WS_F = 0, 0x400000, 0x600000, 0xD00000, 0xD10000
WS_AUG = 0xD08000 + 0x40000
F_EP, F_A, F_2, F_GO, F_3, F_XW = WS_F, WS_F+0x1000, WS_F+0x2000, WS_F+0x24000, WS_F+0x28000, WS_F+0x30000
WS_STAMP = 0xE00000
WS_BYTES = 0x1400000
WS_T2 = 0x1000000
DUAL = 0x800
DUAL3 = 0x4000
TAGK = 0x9E3779B9
CA, CAS = 0, 4160
XK, XKS = 33280, 4608
XX, SS, RED = 42496, 50688, 67072
HS, LS = 99840, 128512
BS = 1056
KT = 42496; VT = KT + 9*BS; XT = VT + 8*BS; OUT = XT + 8*BS
assert OUT % 16 == 0 and OUT + 16384 <= LS
NSL = 7
ST = 157184
FL = ST + 4096
HT, W2B = 0, 57344
LDS_BYTES = 163840
GC1 = -2.0*0.7978845608028654*1.4426950408889634
GC2 = GC1*0.044715
NAME = "sequential_preLN__ssm_conv_h3__mixer_channel_mlp__prompt_kernel"

class Cfg:
    stamp = False; stamps = 'all'
    sc_hid = "sc1"; kfast = 24
    pretouch = True; codewarm = True; stream = True
    n47 = 0; npre = 0; pool = 40; look = 13
    pf = 3; tr0 = 12; trstep = 3; trlat = 6; gspan = 14; fin0 = 2; finspan = 16
    f0pos = 0.3; p0pos = 0.02; nb0 = 10; p1 = 11
    timeout = 200000
    pad = 0
    hidpt = False
    nbp = True
    p0iss = 50
    p1iss = 8
    lead = 2
    lead1 = 6
    rot = True
    lsp = 10
    loearly = True
    f1k = 4
    slp = 1
    cprio = True
    early = True
    tlb = False
    nr = 7
    nex = 8
    pollw = 7
    order = 'B'
    f0lat = 1
    sprio = True
    cyc = False
    dstep = 3
    d0 = 0
    prio = 0
    w2pre = False
    xall = True
    late = True
    extra = 12

sTAG = 3
K_, V_, X_, WS_, HK_, W1_, W2_, SM_, O_ = 16, 20, 24, 28, 32, 36, 40, 44, 48
sXG, sM, sW, sJ, sRT, sFS = 52, 53, 54, 55, 56, 57
sRHO, sFT, sSTG = 69, 68, 66

def srd(A, r, lo, hi, nbytes):
    A(f"""s_mov_b32 s{r}, s{lo}
    s_and_b32 s{r+1}, s{hi}, 0xffff
    s_mov_b32 s{r+2}, {nbytes}
    s_mov_b32 s{r+3}, 0x20000""")
def R(r): return f"s[{r}:{r+3}]"

def tr_pattern(A, dst0, dst1, lane, t0, t1, t2):
    A(f"""v_and_b32 v{t0}, 3, v{lane}
    v_bfe_u32 v{t1}, v{lane}, 2, 2
    v_lshrrev_b32 v{t2}, 5, v{lane}
    v_lshl_add_u32 v{t2}, v{t2}, 2, v{t1}
    v_lshlrev_b32 v{dst0}, 7, v{t2}
    v_lshrrev_b32 v{t1}, 1, v{t1}
    v_lshlrev_b32 v{t1}, 6, v{t1}
    v_add_u32 v{dst0}, v{dst0}, v{t1}
    v_bfe_u32 v{t1}, v{lane}, 4, 1
    v_lshl_add_u32 v{dst0}, v{t1}, 5, v{dst0}
    v_lshl_add_u32 v{dst0}, v{t0}, 3, v{dst0}
    v_xor_b32 v{dst1}, 64, v{dst0}""")

def dma_swz(A, dst, lane, t0, t1, rowstride, sh=6):
    A(f"""v_lshrrev_b32 v{t0}, 3, v{lane}
    v_mul_u32_u24 v{t0}, {rowstride}, v{t0}
    v_and_b32 v{t1}, 7, v{lane}
    v_lshlrev_b32 v{t1}, 4, v{t1}
    v_bfe_u32 v{dst}, v{lane}, 4, 1
    v_lshlrev_b32 v{dst}, {sh}, v{dst}
    v_xor_b32 v{t1}, v{t1}, v{dst}
    v_add_u32 v{dst}, v{t0}, v{t1}""")

def conv_body(A, lg, cset, vA, vB, acc, pool, lookahead=13, age=7, done=None):
    mf = []
    for i in range(4):
        prs = [(vv, c-vv, c) for c in cset for vv in range(c+1)]
        prs.sort(key=lambda t: (max(t[0], t[1]), t[2], t[0]))
        for vv, e, c in prs: mf.append((("A", i, vv), ("B", i, e), c))
    order = []
    for a, b, c in mf:
        for x in (a, b):
            if x not in order: order.append(x)
    last = {}
    for n, (a, b, c) in enumerate(mf): last[a] = n; last[b] = n
    lastc = {}
    for n, (a, b, c) in enumerate(mf): lastc[c] = n
    free = list(pool); reg = {}; tok = {}; nxt = 0; first = set(); hist = []; cur = [0]
    def issue(x):
        r = free.pop(0); reg[x] = r
        k, i, z = x
        if k == "A":
            lg.issue(); A(f"ds_read_b64 v[{r}:{r+1}], v{vA} offset:{64*i+512*z}")
            tok[x] = lg.issue(); A(f"ds_read_b64 v[{r+2}:{r+3}], v{vA} offset:{64*i+512*z+8}")
        else:
            tok[x] = lg.issue(); A(f"ds_read_b128 v[{r}:{r+3}], v{vB} offset:{512*z+64*(3-i)}")
        hist.append((tok[x], cur[0]))
    for n, (a, b, c) in enumerate(mf):
        cur[0] = n
        while a not in reg or b not in reg:
            issue(order[nxt]); nxt += 1
        k = 0
        while nxt < len(order) and free and lg.issued - lg.done + 2 <= lookahead and (k < 1 or n < 4):
            issue(order[nxt]); nxt += 1; k += 1
        need = max(tok[a], tok[b])
        if need > lg.done:
            lg.wait(max([need] + [t for (t, when) in hist if when <= n - age]))
        cin = v(acc[c], 4) if c in first else "0"
        first.add(c)
        A(f"v_mfma_f32_16x16x32_bf16 {v(acc[c],4)}, {v(reg[a],4)}, {v(reg[b],4)}, {cin}")
        for x in (a, b):
            if last[x] == n: free.append(reg[x])
        if done:
            for cc in cset:
                if lastc[cc] + 8 == n: done(cc)
    if done:
        rem = [cc for cc in cset if lastc[cc] + 8 >= len(mf)]
        A("s_nop 7")
        for cc in rem: done(cc)

def rowstat(A):
    for i in range(4): A(f"v_dot2_f32_bf16 v28, v{16+i}, s15, v28\nv_dot2_f32_bf16 v29, v{16+i}, v{16+i}, v29")
    A("s_nop 2")
    for dpp in ("quad_perm:[1,0,3,2] row_mask:0xf", "quad_perm:[2,3,0,1] row_mask:0xf", "row_half_mirror row_mask:0xf", "row_mirror row_mask:0xf",
                "row_bcast:15 row_mask:0xa", "row_bcast:31 row_mask:0xc"):
        A(f"""v_add_f32_dpp v28, v28, v28 {dpp} bank_mask:0xf
        v_add_f32_dpp v29, v29, v29 {dpp} bank_mask:0xf
        s_nop 0""")
    A(f"""v_mul_f32 v28, {fhex(1/448)}, v28
    v_mul_f32 v29, {fhex(1/448)}, v29
    v_fma_f32 v29, -v28, v28, v29
    v_max_f32 v29, 0, v29
    v_add_f32 v29, {fhex(1e-5)}, v29
    v_rsq_f32 v16, v29
    v_mov_b32 v18, s{sTAG}
    v_mov_b32 v19, s{sTAG}
    v_mul_f32 v17, -v28, v16
    s_lshl_b32 s63, s63, 4
    s_add_u32 s63, s63, {WS_S}
    s_mov_b32 exec_lo, 0
    s_mov_b32 exec_hi, 0x80000000
    buffer_store_dwordx4 v[16:19], v6, {R(WS_)}, s63 offen sc1
    s_mov_b64 exec, -1""")

def gen(cfg):
    A = Asm(); vm = Cnt(A, "vmcnt", 63); lg = Cnt(A, "lgkmcnt", 15)
    def stamp(n, drain=False):
        if cfg.stamp and (cfg.stamps == 'all' or str(n) in cfg.stamps.split(',')):
            if drain: lg.waitall()
            assert lg.issued == lg.done
            A(f"{'s_memtime' if cfg.cyc else 's_memrealtime'} s[98:99]\ns_waitcnt lgkmcnt(0)\ns_mov_b32 s{70+n}, s98")
    def poll(voff, soff, vdat=15, dual=0):
        L = A.label("POLL"); Dn = A.label("POLLD")
        A(f"""s_mov_b32 s60, 0
        {L}:
        buffer_load_dword v{vdat}, v{voff}, {R(WS_)}, {soff} offen sc1
        s_waitcnt vmcnt(0)
        v_cmp_ne_u32 vcc, s{sTAG}, v{vdat}
        s_cbranch_vccz {Dn}
        s_add_u32 s60, s60, 1
        s_cmp_lt_u32 s60, {cfg.kfast}
        s_cbranch_scc1 {L}
        s_xor_b32 {soff}, {soff}, {dual}
        s_cmp_lt_u32 s60, {cfg.timeout}
        s_cbranch_scc1 {L}
        {Dn}:""")
    def sync_vm(): vm.restore((vm.issued, vm.issued))
    def poll_issue(voff, soff, vdat):
        A(f"buffer_load_dword v{vdat}, v{voff}, {R(WS_)}, {soff} offen sc1")
        return vm.issue()
    def poll_check(tok, voff, soff, vdat):
        vm.wait(tok)
        Dn = A.label("PCK")
        A(f"v_cmp_ne_u32 vcc, s{sTAG}, v{vdat}\ns_cbranch_vccz {Dn}")
        poll(voff, soff, vdat=vdat, dual=DUAL3)
        A(f"{Dn}:")
    def mlp_ids():
        A(f"""s_mul_i32 s{sRT}, s{sM}, 37
        s_lshr_b32 s{sRT}, s{sRT}, 8
        s_mul_i32 s{sFS}, s{sRT}, 7
        s_sub_u32 s{sFS}, s{sM}, s{sFS}
        s_lshr_b32 s{sRHO}, s{sW}, 1
        s_add_u32 s{sRHO}, s{sRHO}, s{sRT}
        s_and_b32 s{sRHO}, s{sRHO}, 3
        s_lshl_b32 s60, s{sXG}, 2
        s_add_u32 s{sRT}, s{sRT}, s60
        s_lshl_b32 s{sFT}, s{sFS}, 3
        s_add_u32 s{sFT}, s{sFT}, s{sW}""")
    def bias_loads(b1=False):
        if b1:
            srd(A, SM_, 6, 7, F*2)
            A(f"""v_and_b32 v4, 31, v1
            s_lshl_b32 s60, s{sFT}, 6
            v_lshl_add_u32 v31, v4, 1, s60
            buffer_load_ushort v31, v31, {R(SM_)}, 0 offen""")
        srd(A, SM_, 10, 11, D*2)
        A(f"buffer_load_dwordx4 v[24:27], v2, {R(SM_)}, 0 offen")
        vm.issue(1)
    A(f"""s_cmp_ge_u32 s2, 256
    s_cbranch_scc1 END
    s_load_dwordx4 s[4:7], s[0:1], 0
    s_load_dwordx4 s[8:11], s[0:1], 16
    s_load_dwordx2 s[12:13], s[0:1], 104
    s_load_dwordx4 s[64:67], s[0:1], 32""")
    if cfg.pad: A("s_memrealtime s[96:97]")
    if cfg.stamp:
        A("s_memrealtime s[70:71]\ns_memtime s[100:101]")
    A(f"""s_and_b32 s{sXG}, s2, 7
    s_lshr_b32 s{sM}, s2, 3
    v_and_b32 v1, 63, v0
    v_lshrrev_b32 v4, 6, v0
    v_lshlrev_b32 v2, 4, v1
    v_readfirstlane_b32 s{sW}, v4""")
    dma_swz(A, 3, 1, 5, 6, 896, sh=4)
    A(f"""s_mul_i32 s58, s{sM}, {64*896}
    s_lshl_b32 s59, s{sXG}, 7
    s_add_u32 s58, s58, s59
    v_add_u32 v3, s58, v3
    s_mul_i32 s61, s{sW}, {8*896}
    s_mul_i32 s62, s{sW}, {BS}
    s_lshl_b32 s{sJ}, s{sXG}, 5
    s_add_u32 s{sJ}, s{sJ}, s{sM}
    s_mov_b32 s59, {F_EP}
    s_cmp_eq_u32 s{sXG}, 7
    s_waitcnt lgkmcnt(0)
    s_load_dword s{sTAG}, s[12:13], s59""")
    if cfg.stamp:
        for i in range(1, 28): A(f"s_mov_b32 s{70+i}, 0")
    srd(A, X_, 4, 5, NBX); srd(A, K_, 6, 7, NBX); srd(A, V_, 8, 9, NBX)
    A(f"""s_cmp_eq_u32 s{sXG}, 7
    s_cbranch_scc1 XSTAT
    s_cmp_lg_u32 s{sW}, 0
    s_cbranch_scc1 P1_NH
    v_add_u32 v4, {(-7168)&0xffffffff}, v3
    s_mov_b32 m0, {KT}
    s_nop 0
    buffer_load_dwordx4 v4, {R(K_)}, 0 offen lds
    P1_NH:
    s_add_u32 m0, s62, {KT+BS}
    s_nop 0
    buffer_load_dwordx4 v3, {R(K_)}, s61 offen lds
    s_add_u32 m0, s62, {VT}
    s_nop 0
    buffer_load_dwordx4 v3, {R(V_)}, s61 offen lds
    s_add_u32 m0, s62, {XT}""")
    srd(A, SM_, 10, 11, D*8)
    A(f"""buffer_load_dwordx4 v3, {R(X_)}, s61 offen lds
    v_bfe_u32 v4, v1, 4, 1
    v_and_b32 v5, 3, v1
    v_lshl_add_u32 v8, v4, 2, v5
    s_lshl_b32 s59, s{sW}, 3
    v_add_u32 v8, s59, v8
    s_lshl_b32 s59, s{sXG}, 6
    v_add_lshl_u32 v4, v8, s59, 3
    buffer_load_dwordx2 v[10:11], v4, {R(SM_)}, 0 offen""")
    vm.issue(3); tKVX = vm.issue()
    srd(A, WS_, 12, 13, WS_BYTES)
    if cfg.late and cfg.order == 'B': A("s_waitcnt vmcnt(3)")
    def pretouch():
        A(f"""s_lshl_b32 s60, s{sJ}, 14
        s_lshl_b32 s62, s{sW}, 11
        s_add_u32 s60, s60, s62
        buffer_load_dwordx4 v[24:27], v2, {R(WS_)}, s60 offen
        buffer_load_dwordx4 v[24:27], v2, {R(WS_)}, s60 offen offset:1024
        s_lshl_b32 s60, s{sXG}, 7
        s_add_u32 s60, s60, {F_A}
        buffer_load_dword v24, v1, {R(WS_)}, s60 offen sc1""")
        vm.issue(3)
    if cfg.pretouch and cfg.order == 'B': pretouch()
    A(f"""s_lshr_b32 s58, s{sW}, 2
    s_and_b32 s59, s{sW}, 3
    s_lshl_b32 s68, s{sJ}, 1
    s_add_u32 s68, s68, s58
    s_lshl_b32 s68, s68, 12
    s_add_u32 s64, s64, s68
    s_addc_u32 s65, s65, 0""")
    srd(A, HK_, 64, 65, 4096)
    A(f"""s_lshl_b32 s59, s59, 10
    v_add_u32 v4, s59, v2
    v_add_u32 v5, -8, v4
    buffer_load_dwordx2 v[112:113], v5, {R(HK_)}, 0 offen
    buffer_load_dwordx4 v[114:117], v4, {R(HK_)}, 0 offen
    s_mul_i32 s58, s58, {4*CAS}
    s_add_u32 s58, s58, {CA+32}
    v_add_u32 v13, s58, v4
    s_lshl_b32 s68, s{sJ}, 2
    s_load_dword s14, s[66:67], s68
    s_load_dwordx4 s[4:7], s[0:1], 56
    s_load_dwordx4 s[8:11], s[0:1], 72
    s_load_dwordx2 s[64:65], s[0:1], 88""")
    vm.issue(2)
    A(f"""s_lshl_b32 s63, s2, 3
    s_add_u32 s63, s63, s{sW}
    s_mul_i32 s68, s63, 896
    v_add_u32 v7, s68, v2
    v_cmp_gt_u32 vcc, 56, v1
    v_mov_b32 v9, 0x80000000
    s_mov_b32 s15, 0x3f803f80
    v_cndmask_b32 v7, v9, v7, vcc
    v_mov_b32 v28, 0
    v_mov_b32 v29, 0
    buffer_load_dwordx4 v[16:19], v7, {R(X_)}, 0 offen""")
    vm.issue()
    A(f"""v_lshrrev_b32 v4, 5, v1
    v_and_b32 v5, 3, v1
    v_lshl_add_u32 v6, v4, 2, v5
    v_mul_u32_u24 v20, {BS}, v6
    v_bfe_u32 v5, v1, 2, 2
    v_lshl_add_u32 v20, v5, 7, v20
    v_lshrrev_b32 v6, 1, v5
    v_xor_b32 v6, s{sW}, v6
    v_lshl_add_u32 v20, v6, 4, v20
    v_bfe_u32 v6, v1, 4, 1
    v_lshl_add_u32 v20, v6, 3, v20
    v_lshl_add_u32 v4, v4, 2, v5
    v_lshl_add_u32 v4, v8, 1, v4
    v_and_b32 v4, 7, v4
    v_lshlrev_b32 v4, 4, v4
    v_lshl_add_u32 v21, v8, 7, v4
    v_add_u32 v21, {OUT}, v21
    v_lshrrev_b32 v8, 3, v0
    v_and_b32 v5, 7, v0
    v_lshl_add_u32 v4, v8, 1, v5
    v_and_b32 v4, 7, v4
    v_lshlrev_b32 v4, 4, v4
    v_lshl_add_u32 v22, v8, 7, v4
    v_add_u32 v22, {OUT}, v22
    v_lshrrev_b32 v4, 1, v8
    v_lshlrev_b32 v4, 14, v4
    v_and_b32 v8, 1, v8
    v_lshl_add_u32 v4, v8, 12, v4
    v_lshl_add_u32 v4, v5, 4, v4
    s_lshl_b32 s58, s{sXG}, 19
    s_lshl_b32 s59, s{sM}, 7
    s_add_u32 s58, s58, s59
    v_add_u32 v23, s58, v4
    s_mov_b32 s58, 0xffff0000
    s_mov_b32 s59, 8192
    v_mov_b32 v6, 0
    v_and_b32 v4, 15, v1
    v_lshlrev_b32 v4, 2, v4
    v_add_u32 v4, {FL}, v4
    ds_write_b32 v4, v6""")
    mlp_ids()
    if cfg.pretouch and cfg.order == 'A':
        vm.wait(tKVX-3); pretouch()
    stamp(1)
    vm.wait(tKVX)
    A("s_waitcnt lgkmcnt(0)")
    bias_loads()
    A("s_barrier")
    stamp(2)
    for i, off in enumerate((KT+512, KT+BS, KT+BS+512, VT, VT+512)):
        A(f"ds_read_b64_tr_b16 v[{32+2*i}:{33+2*i}], v20 offset:{off}")
    A(f"""ds_read_b64_tr_b16 v[44:45], v20 offset:{XT}
    ds_read_b64_tr_b16 v[46:47], v20 offset:{XT+512}
    v_lshlrev_b32 v48, 16, v10
    v_and_b32 v49, s58, v10
    v_lshlrev_b32 v50, 16, v11
    v_and_b32 v51, s58, v11
    s_add_u32 s{sTAG}, s{sTAG}, {TAGK}
    s_waitcnt lgkmcnt(4)""")
    for i in range(-3, 8):
        src = 32 + (i+4)//2
        A(f"v_and_b32 v{55+i}, s58, v{src}" if (i+4) & 1 else f"v_lshlrev_b32 v{55+i}, 16, v{src}")
    A("s_waitcnt lgkmcnt(0)")
    A(f"ds_write_b128 v21, v[44:47] offset:8192")
    for t in range(8):
        A(f"v_and_b32 v{72+(t&1)}, s58, v{38+t//2}" if t & 1 else f"v_lshlrev_b32 v{72+(t&1)}, 16, v{38+t//2}")
        A(f"""v_mul_f32 v{64+t}, v{55+t}, v48
        v_fmac_f32 v{64+t}, v{54+t}, v49
        v_fmac_f32 v{64+t}, v{53+t}, v50
        v_fmac_f32 v{64+t}, v{52+t}, v51
        v_mul_f32 v{64+t}, v{64+t}, v{72+(t&1)}""")
    for i in range(4): A(f"v_cvt_pk_bf16_f32 v{76+i}, v{71-2*i}, v{70-2*i}")
    A(f"""ds_write_b128 v21, v[76:79]
    s_waitcnt lgkmcnt(0)
    s_barrier
    ds_read_b128 v[32:35], v22
    ds_read_b128 v[36:39], v22 offset:8192
    s_waitcnt lgkmcnt(1)
    buffer_store_dwordx4 v[32:35], v23, {R(WS_)}, 0 offen
    s_waitcnt lgkmcnt(0)
    buffer_store_dwordx4 v[36:39], v23, {R(WS_)}, s59 offen
    s_lshl_b32 s61, s{sXG}, 7
    s_add_u32 s61, s61, {F_A}
    s_lshl_b32 s62, s{sM}, 2
    s_add_u32 s62, s62, s61
    s_getreg_b32 s32, hwreg(HW_REG_XCC_ID, 0, 4)
    s_add_u32 s32, s32, s{sTAG}
    s_add_u32 s32, s32, 1
    v_mov_b32 v30, s32""")
    stamp(3)
    def mlp_setup(x7=False, zero=True):
        stg = f"""s_xor_b32 s58, s{sW}, 4
        s_mul_i32 s58, s58, {NSL*1024}
        s_add_u32 s{sSTG}, s58, {HS}"""
        srd(A, W1_, 4, 5, D*F*2); srd(A, W2_, 8, 9, D*F*2); srd(A, O_, 64, 65, NBX)
        A(f"""v_lshrrev_b32 v5, 2, v1
        v_mul_u32_u24 v5, 3584, v5
        v_and_b32 v7, 3, v1
        v_lshl_add_u32 v3, v7, 4, v5
        s_lshl_b32 s58, s{sFT}, 6
        v_add_u32 v3, s58, v3
        v_bfe_u32 v5, v1, 2, 2
        v_lshrrev_b32 v12, 5, v1
        v_lshl_add_u32 v12, v12, 2, v5
        v_lshlrev_b32 v12, 6, v12
        v_bfe_u32 v5, v1, 4, 1
        v_lshl_add_u32 v12, v5, 5, v12
        v_lshl_add_u32 v12, v7, 3, v12
        {stg}
        v_add_u32 v12, s{sSTG}, v12
        s_mov_b32 s15, 0x3f803f80""")
        pass
    def slot1(it):
        return ("s%d" % sSTG, (it % NSL)*1024, 12)
    def w1dma(it, sl=None):
        base, off, _ = sl if sl else slot1(it)
        if it % 7 == 0:
            A(f"""s_add_u32 s67, s{sRHO}, {it//7}
            s_and_b32 s67, s67, 3
            s_mul_i32 s67, s67, {7*57344}
            s_add_u32 m0, {base}, {off}
            s_nop 0""")
        else:
            A(f"s_add_u32 m0, {base}, {off}\ns_add_u32 s67, s67, 57344")
        A(f"buffer_load_dwordx4 v3, {R(W1_)}, s67 offen lds")
        return vm.issue()
    if cfg.early:
        A(f"""s_cmp_lt_u32 s{sW}, 4
        s_cbranch_scc1 EA_NO
        s_cmp_ge_u32 s{sM}, 28
        s_cbranch_scc1 EA_NO
        s_nop 0""")
        mlp_setup(zero=False)
        for it in range(NSL): w1dma(it)
        A(f"s_waitcnt vmcnt({NSL})\ns_branch EA_J\nEA_NO:\ns_waitcnt vmcnt(0)\nEA_J:")
    else:
        A("s_waitcnt vmcnt(0)")
    A(f"""s_barrier
    s_cmp_lg_u32 s{sW}, 0
    s_cbranch_scc1 P1_NF
    s_mov_b64 exec, 1
    buffer_store_dword v30, v6, {R(WS_)}, s62 offen
    s_mov_b64 exec, -1
    P1_NF:""")
    sync_vm()
    rowstat(A)
    A(f"""v_alignbit_b32 v120, v113, v112, 16
    v_alignbit_b32 v121, v114, v113, 16
    v_alignbit_b32 v122, v115, v114, 16
    v_alignbit_b32 v123, v116, v115, 16
    v_mov_b32 v124, v113
    v_mov_b32 v125, v114
    v_mov_b32 v126, v115
    v_mov_b32 v127, v116
    v_alignbit_b32 v128, v114, v113, 16
    v_alignbit_b32 v129, v115, v114, 16
    v_alignbit_b32 v130, v116, v115, 16
    v_alignbit_b32 v131, v117, v116, 16
    ds_write_b128 v13, v[120:123]
    ds_write_b128 v13, v[124:127] offset:{CAS}
    ds_write_b128 v13, v[128:131] offset:{2*CAS}
    ds_write_b128 v13, v[114:117] offset:{3*CAS}""")
    A(f"""s_lshl_b32 s58, s{sJ}, 14
    s_lshl_b32 s59, s{sW}, 10
    s_add_u32 s2, s58, s59
    s_lshr_b32 s63, s{sW}, 2
    s_mul_i32 s63, s63, {XKS-4096}
    s_add_u32 s63, s63, s59
    s_add_u32 m0, s63, {XK+480}
    v_and_b32 v10, 15, v1
    v_lshrrev_b32 v11, 4, v1
    s_bfe_u32 s58, s{sW}, 0x10001
    s_and_b32 s63, s{sW}, 1
    v_mov_b32 v19, 1
    s_cmp_ge_u32 s{sW}, 4
    s_cbranch_scc1 SET_HI
    v_mov_b32 v8, 0
    v_mov_b32 v9, 0
    s_mul_i32 s60, s58, {XKS}
    v_lshl_add_u32 v7, v1, 3, s60
    s_mov_b32 exec_hi, 0x0fffffff
    ds_write_b64 v7, v[8:9] offset:{XK}
    v_lshrrev_b32 v7, 2, v1
    v_mul_u32_u24 v7, {CAS}, v7
    v_and_b32 v4, 3, v1
    v_lshl_add_u32 v7, v4, 3, v7
    s_mov_b32 exec_hi, 0
    ds_write_b64 v7, v[8:9] offset:{CA}
    s_mov_b64 exec, -1
    v_and_b32 v4, 3, v10
    v_mul_u32_u24 v4, {CAS}, v4
    v_and_b32 v13, 12, v10
    v_lshlrev_b32 v13, 1, v13
    v_lshl_add_u32 v13, v11, 4, v13
    s_lshl_b32 s59, s63, 8
    s_mul_i32 s62, s58, {4*CAS}
    s_add_u32 s62, s62, s59
    s_add_u32 s62, s62, {CA+8}
    v_add3_u32 v14, v4, v13, s62
    v_lshlrev_b32 v20, 5, v10
    v_lshlrev_b32 v4, 4, v11
    v_sub_u32 v20, v20, v4
    s_add_u32 s62, s60, {XK+496-192}
    s_sub_u32 s62, s62, s59
    v_add_u32 v20, s62, v20
    s_lshl_b32 s62, s{sW}, 13
    s_add_u32 s62, s62, {RED}
    v_add_u32 v24, s62, v2
    s_lshl_b32 s62, s{sW}, 2
    s_add_u32 s62, s62, {FL+16}
    v_mov_b32 v21, s62
    v_mov_b32 v22, {FL+48}
    s_waitcnt lgkmcnt(0)
    s_barrier""")
    stamp(4)
    A(f"""buffer_load_dwordx4 v2, {R(WS_)}, s2 offen sc1 lds
    ds_read_b32 v15, v22
    s_waitcnt lgkmcnt(0)
    v_cmp_ne_u32 vcc, 0, v15
    s_cbranch_vccnz SLOW1
    LO_BACK:
    s_waitcnt vmcnt(0)
    s_barrier""")
    W1R = 144
    NR = cfg.nr
    def w1cons(it, sl):
        r = W1R + 4*it; _, so, va = sl
        lg.issue(); A(f"ds_read_b64_tr_b16 v[{r}:{r+1}], v{va} offset:{so}")
        t = lg.issue(); A(f"ds_read_b64_tr_b16 v[{r+2}:{r+3}], v{va} offset:{so+512}")
        return t
    def w1segs():
        for q in range(1, 4):
            A(f"""s_add_u32 s60, s{sRHO}, {q}
            s_and_b32 s60, s60, 3
            s_mul_i32 s{3+q}, s60, {7*57344}""")
        A(f"v_add_u32 v26, {57344-1024}, v3\nv_add_u32 v27, {2*(57344-1024)}, v3\nv_add_u32 v28, {3*(57344-1024)}, v3")
    def w1grp(its, sls):
        it0 = its[0]; base, off, _ = sls[0]
        A(f"s_add_u32 m0, {base}, {off}\ns_add_u32 s67, s{3+it0//7}, {(it0 % 7)*57344}")
        toks = []
        for k, it in enumerate(its):
            assert it//7 == it0//7 and sls[k][0] == base and sls[k][1] == off + 1024*k and k < 4
            A(f"buffer_load_dwordx4 v{[3, 26, 27, 28][k]}, {R(W1_)}, s67 offen offset:{1024*k} lds")
            toks.append(vm.issue())
        return toks
    def w1issue(pairs, tk):
        i = 0
        while i < len(pairs):
            g = [pairs[i]]; i += 1
            while i < len(pairs) and len(g) < 4 and pairs[i][0]//7 == g[0][0]//7 and pairs[i][1][0] == g[0][1][0] and pairs[i][1][1] == g[0][1][1] + 1024*len(g):
                g.append(pairs[i]); i += 1
            for (it, _), t in zip(g, w1grp([x[0] for x in g], [x[1] for x in g])): tk[it] = t
    def w1ring(exoff, mid=None):
        base = lambda k: ("s%d" % sSTG, k*1024, 12)
        sl = {it: base(it) for it in range(NSL)}
        tk = {it: 0 for it in range(NSL)}
        for e in range(8): sl[7+e] = ("s59", exoff(e), 13)
        for k in range(7): sl[15+k] = base(k)
        for k in range(6): sl[22+k] = base(k)
        w1segs()
        w1issue([(it, sl[it]) for it in range(7, 15)], tk)
        if mid: mid()
        def cons(its):
            vm.wait(tk[its[-1]])
            t = None
            for it in its: t = w1cons(it, sl[it])
            return t
        t = cons([0, 1, 2, 3]); t2 = cons([4, 5, 6])
        lg.wait(t); w1issue([(it, sl[it]) for it in range(15, 19)], tk)
        lg.wait(t2); w1issue([(it, sl[it]) for it in range(19, 22)], tk)
        cons([7, 8, 9, 10]); cons([11, 12, 13, 14])
        t = cons([15, 16, 17]); lg.wait(t); w1issue([(it, sl[it]) for it in range(22, 25)], tk)
        t = cons([18, 19, 20]); lg.wait(t); w1issue([(it, sl[it]) for it in range(25, 28)], tk)
        assert NR == 7
        return tk, sl
    def common_setup():
        dma_swz(A, 24, 1, 4, 5, 896)
        dma_swz(A, 14, 1, 4, 5, 128)
        tr_pattern(A, 4, 5, 1, 6, 7, 8)
        for sgi in range(1, 4):
            A(f"""s_add_u32 s60, s{sRHO}, {sgi}
            s_and_b32 s60, s60, 3
            s_cselect_b32 s60, 1, -3
            s_mul_i32 s{7+sgi}, s60, {7*2048}""")
        A(f"""s_mul_i32 s58, s{sW}, 7168
        v_add_u32 v9, s58, v4
        v_add_u32 v10, s58, v5
        s_mul_i32 s58, s{sW}, 12288
        s_add_u32 s58, s58, {W2B}
        v_add_u32 v7, s58, v4
        v_add_u32 v8, s58, v5
        s_mul_i32 s60, s{sRHO}, {7*2048}
        v_add_u32 v4, s60, v4
        v_add_u32 v5, s60, v5
        v_mov_b32 v23, 0""")
    def spin(vaddr, vexp, vdat):
        L = A.label("SPIN"); Dn = A.label("SPIND")
        A(f"""s_mov_b32 s60, 0
        {L}:
        ds_read_b32 v{vdat}, v{vaddr}
        s_waitcnt lgkmcnt(0)
        v_cmp_ne_u32 vcc, v{vdat}, v{vexp}
        s_cbranch_vccz {Dn}
        {"s_sleep %d" % cfg.slp if cfg.slp else ""}
        s_add_u32 s60, s60, 1
        s_cmp_lt_u32 s60, {cfg.timeout*8}
        s_cbranch_scc1 {L}
        {Dn}:""")
    def b1load():
        srd(A, SM_, 6, 7, F*2)
        A(f"""v_and_b32 v4, 31, v1
        s_lshl_b32 s58, s{sFT}, 6
        v_lshl_add_u32 v6, v4, 1, s58
        buffer_load_ushort v17, v6, {R(SM_)}, 0 offen""")
        vm.issue()
    stamp(5)
    if cfg.cprio: A("s_setprio 3")
    acc = {c: 32+4*c for c in range(8)}
    def redw(c):
        lg.issue(); A(f"ds_write_b128 v24, v[{32+4*c}:{35+4*c}] offset:{1024*c}")
    conv_body(A, lg, list(range(8)), 14, 20, acc, [64+4*i for i in range(cfg.pool)], cfg.look, done=redw)
    lg.waitall()
    A("ds_write_b32 v21, v19")
    if cfg.cprio: A("s_setprio 0")
    stamp(15)
    A(f"""s_cmp_ge_u32 s{sM}, 28
    s_cbranch_scc1 END""")
    mlp_setup()
    A(f"""v_xor_b32 v22, 4, v21
    v_mov_b32 v21, {FL+32}
    s_bfe_u32 s58, s{sW}, 0x10001
    s_mul_i32 s58, s58, {4*CAS}
    s_and_b32 s59, s{sW}, 1
    s_lshl_b32 s59, s59, 13
    s_add_u32 s59, s59, s58
    s_sub_u32 s58, s59, s{sSTG}
    v_add_u32 v13, s58, v12""")
    sync_vm()
    if cfg.loearly:
        spin(22, 19, 15)
        def mid():
            common_setup(); spin(21, 19, 15); stamp(7)
        tkr, slr = w1ring(lambda e: e*1024, mid)
    else:
        common_setup(); spin(21, 19, 15); stamp(7)
        tkr, slr = w1ring(lambda e: e*1024)
    st_lo = vm.state()
    A("s_branch RING_J")
    A(f"""SET_HI:
    v_and_b32 v22, 31, v1
    v_lshlrev_b32 v22, 2, v22
    s_cmp_lg_u32 s{sW}, {cfg.pollw}
    s_cbranch_scc1 H1_W""")
    A(f"""s_mov_b32 s60, 0
    H1_P:
    buffer_load_dword v15, v22, {R(WS_)}, s61 offen sc1
    s_waitcnt vmcnt(0)
    v_cmp_ne_u32 vcc, s32, v15
    s_cbranch_vccz H1_W
    s_add_u32 s60, s60, 1
    s_cmp_lt_u32 s60, {cfg.kfast}
    s_cbranch_scc1 H1_P
    v_mov_b32 v15, {FL+48}
    ds_write_b32 v15, v19
    H1_W:
    v_mov_b32 v21, {FL+48}
    s_and_b32 s60, s{sW}, 3
    s_lshl_b32 s59, s60, 11
    s_lshl_b32 s62, s{sJ}, 14
    s_add_u32 s62, s62, s59
    s_add_u32 s62, s62, 8192
    s_waitcnt lgkmcnt(0)
    s_barrier""")
    stamp(4)
    A(f"""buffer_load_dwordx4 v2, {R(WS_)}, s2 offen sc1 lds
    ds_read_b32 v15, v21
    s_waitcnt lgkmcnt(0)
    v_cmp_ne_u32 vcc, 0, v15
    s_cbranch_vccnz SLOW1
    HI_BACK:
    s_add_u32 m0, s59, {XX}
    s_and_b32 s60, s{sW}, 3
    buffer_load_dwordx4 v2, {R(WS_)}, s62 offen sc1 lds
    buffer_load_dwordx4 v2, {R(WS_)}, s62 offen offset:1024 sc1 lds
    s_lshl_b32 s2, s60, 13
    s_add_u32 s61, s2, {WS_S}
    s_add_u32 s62, s61, 4096
    s_waitcnt vmcnt(2)
    s_barrier""")
    def sloads():
        for i in range(8):
            A(f"buffer_load_dwordx4 v[{32+4*i}:{35+4*i}], v2, {R(WS_)}, s{61 if i < 4 else 62} offen offset:{1024*(i&3)} sc1")
    sloads()
    def partner():
        A(f"""v_add_u32 v4, -256, v3
        s_xor_b32 s62, s{sRHO}, 2
        s_mul_i32 s62, s62, {7*57344}""")
        for it in range(NSL):
            A(f"""s_add_u32 m0, s{sSTG}, {it*1024 + 4*NSL*1024}
            s_nop 0
            buffer_load_dwordx4 v4, {R(W1_)}, s62 offen lds
            s_add_u32 s62, s62, 57344""")
    mlp_setup()
    A(f"""s_mov_b32 s60, 0
    s_cmp_ge_u32 s{sM}, 28
    s_cbranch_scc1 S_W0""")
    if cfg.early: partner()
    else:
        for it in range(NSL): w1dma(it)
    A(f"s_waitcnt vmcnt({NSL})\ns_branch S_CHK\nS_RETRY:\ns_add_u32 s62, s61, 4096")
    sloads()
    A("S_W0:\ns_waitcnt vmcnt(0)\nS_CHK:")
    A(f"v_cmp_ne_u32 vcc, s{sTAG}, v34")
    for i in range(1, 8):
        A(f"v_cmp_ne_u32 s[62:63], s{sTAG}, v{34+4*i}\ns_or_b64 vcc, vcc, s[62:63]")
    A(f"""s_cmp_eq_u64 vcc, 0
    s_cbranch_scc1 S_OK
    s_add_u32 s60, s60, 1
    s_cmp_lt_u32 s60, {cfg.timeout}
    s_cbranch_scc1 S_RETRY
    S_OK:
    s_lshr_b32 s2, s2, 1
    s_add_u32 s2, s2, {SS}
    v_lshl_add_u32 v17, v1, 3, s2""")
    for i in range(8):
        A(f"ds_write_b64 v17, v[{32+4*i}:{33+4*i}] offset:{512*i}")
    A(f"""s_bfe_u32 s58, s{sW}, 0x10001
    s_and_b32 s63, s{sW}, 1
    v_mov_b32 v30, {FL}
    v_mov_b32 v23, 4
    s_waitcnt lgkmcnt(0)
    s_mov_b64 exec, 1
    ds_add_u32 v30, v19
    s_mov_b64 exec, -1
    s_lshl_b32 s62, s58, 14
    s_lshl_b32 s59, s63, 12
    s_add_u32 s62, s62, s59
    s_add_u32 s2, s62, {RED}
    v_add_u32 v25, s2, v2
    v_lshlrev_b32 v4, 5, v10
    v_lshl_add_u32 v4, v11, 3, v4
    s_lshl_b32 s59, s63, 11
    s_mul_i32 s60, s58, {XKS}
    s_add_u32 s62, s60, s59
    s_add_u32 s62, s62, {XK+480}
    v_xor_b32 v5, 8, v4
    v_add_u32 v26, s62, v5
    s_lshl_b32 s62, s58, 12
    s_add_u32 s62, s62, s59
    s_add_u32 s62, s62, {XX}
    v_add_u32 v27, s62, v4
    s_lshl_b32 s62, s59, 2
    s_add_u32 s62, s62, {SS}
    v_lshl_add_u32 v28, v4, 2, s62
    v_lshrrev_b32 v4, 2, v10
    v_and_b32 v5, 1, v11
    v_lshl_add_u32 v4, v5, 2, v4
    s_lshl_b32 s62, s63, 4
    v_add_u32 v4, s62, v4
    v_mul_u32_u24 v4, 57344, v4
    v_and_b32 v5, 3, v10
    v_lshlrev_b32 v5, 5, v5
    v_lshrrev_b32 v7, 1, v11
    v_lshl_add_u32 v5, v7, 4, v5
    s_lshl_b32 s62, s{sJ}, 1
    s_add_u32 s62, s62, s58
    s_lshl_b32 s62, s62, 7
    s_add_u32 s62, s62, {WS_H}
    v_add3_u32 v29, v4, v5, s62
    s_lshl_b32 s62, s14, 16
    s_and_b32 s14, s14, 0xffff0000
    s_cmp_eq_u32 s58, 0
    s_cselect_b32 s14, s62, s14
    s_mov_b32 s62, 0xffff0000""")
    spin(30, 23, 15)
    stamp(15)
    A(f"""s_lshl_b32 s58, s58, 3
    s_add_u32 s58, s58, {FL+16}
    v_and_b32 v30, 1, v1
    v_lshl_add_u32 v30, v30, 2, s58
    v_mov_b32 v21, {FL+32}""")
    def unp(dst, reg, hi): return f"v_and_b32 v{dst}, s62, v{reg}" if hi else f"v_lshlrev_b32 v{dst}, 16, v{reg}"
    tke = {}
    for c in range(4):
        if c == 3: lg.wait(tke[0])
        lg.issue(); A(f"ds_read_b64 v[{80+2*c}:{81+2*c}], v26 offset:{512*c}")
        lg.issue(); A(f"ds_read_b64 v[{88+2*c}:{89+2*c}], v27 offset:{512*c}")
        lg.issue(); A(f"ds_read_b128 v[{96+8*c}:{99+8*c}], v28 offset:{2048*c}")
        tke[c] = lg.issue(); A(f"ds_read_b128 v[{100+8*c}:{103+8*c}], v28 offset:{2048*c+16}")
    for c in range(4):
        lg.wait(tke[c])
        kv, xx, sr = 80+2*c, 88+2*c, 96+8*c
        src = {3: (kv, 0), 2: (kv, 1), 1: (kv+1, 0), 0: (kv+1, 1)}
        for r in range(4):
            q, c0 = 32+4*c+r, 48+4*c+r
            A(unp(132, *src[r])); A(unp(c0, xx+(r>>1), r&1))
            A(f"v_mul_f32 v132, s14, v132")
            A(f"v_fma_f32 v{q}, v{c0}, v{sr+2*r}, v{sr+2*r+1}")
            A(f"v_fmac_f32 v{c0}, v132, v{q}")
    if not cfg.early:
        A(f"s_cmp_ge_u32 s{sM}, 28\ns_cbranch_scc1 HI_NP")
        partner()
        A("HI_NP:")
    A(f"""s_mov_b32 s58, {8*57344}
    s_lshl_b32 s61, s{sJ}, 6
    s_add_u32 s61, s61, {F_2}
    v_mov_b32 v22, {FL+4}
    v_lshlrev_b32 v20, 14, v1""")
    spin(30, 19, 15)
    for c in range(4):
        lg.issue(); A(f"ds_read_b128 v[{64+8*c}:{67+8*c}], v25 offset:{1024*c}")
        tke[c] = lg.issue(); A(f"ds_read_b128 v[{68+8*c}:{71+8*c}], v25 offset:{8192+1024*c}")
    for c in range(4):
        lg.wait(tke[c])
        y = 64+8*c
        for r in range(4): A(f"v_add_f32 v{y+r}, v{y+r}, v{y+4+r}")
        for r in range(4): A(f"v_fmac_f32 v{48+4*c+r}, v{y+r}, v{32+4*c+r}")
        o = 96 + 2*c
        A(f"v_cvt_pk_bf16_f32 v{o}, v{48+4*c}, v{49+4*c}\nv_cvt_pk_bf16_f32 v{o+1}, v{50+4*c}, v{51+4*c}")
        if c & 1:
            A(f"""s_nop 1
            v_permlane16_swap_b32 v{o-2}, v{o}
            v_permlane16_swap_b32 v{o-1}, v{o+1}
            buffer_store_dwordx4 v[{o-2}:{o+1}], v29, {R(WS_)}, {'s58' if c == 3 else '0'} offen sc1""")
    stamp(6)
    common_setup()
    A(f"""s_waitcnt vmcnt(0)
    s_mov_b64 exec, 1
    ds_add_rtn_u32 v15, v22, v19
    s_waitcnt lgkmcnt(0)
    v_cmp_ne_u32 vcc, 3, v15
    s_mov_b64 exec, 0xff
    s_mov_b32 s59, s2
    s_cbranch_vccnz HI_NF
    buffer_store_dword v18, v20, {R(WS_)}, s61 offen sc1
    ds_write_b32 v21, v19
    HI_NF:
    s_mov_b64 exec, -1""")
    A(f"""s_cmp_ge_u32 s{sM}, 28
    s_cbranch_scc1 HELPER
    s_sub_u32 s58, s59, s{sSTG}
    v_add_u32 v13, s58, v12""")
    spin(21, 19, 15)
    stamp(7)
    sync_vm()
    tkr, slr = w1ring(lambda e: (e & 3)*1024 + (e >> 2)*8192)
    assert vm.issued - vm.done == st_lo[0] - st_lo[1]
    A("RING_J:")
    A(f"""s_lshl_b32 s58, s{sFS}, 7
    v_add_u32 v3, s58, v24
    v_add_u32 v6, {7168-1024}, v3
    s_mul_i32 s67, s{sW}, {224*896}
    s_mul_i32 s59, s{sW}, 7168
    s_mul_i32 s{sSTG}, s{sW}, 12288
    s_add_u32 s{sSTG}, s{sSTG}, {W2B}
    s_mul_i32 s58, s{sRT}, 57344
    s_add_u32 s58, s58, s59
    s_add_u32 s58, s58, {WS_H}
    s_add_u32 s63, s58, 4096
    s_lshl_b32 s61, s{sXG}, 7
    s_add_u32 s61, s61, {F_GO}
    v_mov_b32 v24, 0
    v_mov_b32 v25, 0
    v_mov_b32 v26, 0
    v_mov_b32 v27, 0
    s_lshl_b32 s2, s{sFT}, 10
    s_add_u32 s2, s2, {WS_AUG}""")
    PS = [4, 5, 6, 7, 11, 12, 13]
    A(f"""s_and_b32 s60, s{sRT}, 3
    s_lshl_b32 s60, s60, 1
    s_add_u32 s60, s60, s{sFS}
    s_mov_b32 s14, s67""")
    if not cfg.rot: A("s_mov_b32 s60, 0")
    for p in range(7):
        A(f"""s_cmp_ge_u32 s60, 7
        s_cselect_b32 s{PS[p]}, 7, 0
        s_sub_u32 s60, s60, s{PS[p]}
        s_lshl_b32 s{PS[p]}, s60, 12
        s_add_u32 s60, s60, 1""")
    lg.waitall()
    W2A, W2Bq, NA = 80, 144, 8
    def w2reg(ks): return W2A + 8*ks if ks < NA else W2Bq + 8*(ks-NA)
    cnt2 = [0]
    def w2dma(off):
        ks = cnt2[0]; cnt2[0] += 1
        if ks % 2 == 0:
            A(f"s_mul_i32 s67, s{PS[ks//2]}, 7\ns_add_u32 m0, s{sSTG}, {off}\ns_add_u32 s67, s67, s14")
        else:
            A(f"s_add_u32 m0, s{sSTG}, {off}\ns_add_u32 s67, s67, {16*896}")
        A(f"""buffer_load_dwordx4 v3, {R(W2_)}, s67 offen lds
        buffer_load_dwordx4 v6, {R(W2_)}, s67 offen offset:1024 lds""")
        vm.issue(); return vm.issue()
    def w2tr(ks, off):
        r = w2reg(ks); t = None
        for dt in range(2):
            for j in range(2):
                t = lg.issue(); A(f"ds_read_b64_tr_b16 v[{r+4*dt+2*j}:{r+4*dt+2*j+1}], v{7+dt} offset:{off+1024*j}")
        return t
    NP = 0
    stamp(8)
    A(f"""s_cmp_lg_u32 s{sW}, 7
    s_cbranch_scc1 H2_W""")
    poll(23, "s61", dual=DUAL)
    A(f"H2_W:\ns_mov_b32 m0, s59\ns_barrier")
    stamp(9)
    tH_ = []
    for i in range(4):
        A(f"buffer_load_dwordx4 v14, {R(WS_)}, s58 offen offset:{1024*i} sc1 lds"); tH_.append(vm.issue())
    A(f"s_add_u32 m0, s59, 4096\ns_nop 0")
    for i in range(3):
        A(f"buffer_load_dwordx4 v14, {R(WS_)}, s63 offen offset:{1024*i} sc1 lds"); tH_.append(vm.issue())
    A(f"buffer_load_dwordx4 v[16:19], v2, {R(WS_)}, s2 offen sc1")
    tAUG = vm.issue()
    if cfg.pretouch:
        A(f"""s_lshl_b32 s60, s{sRT}, 9
        s_add_u32 s60, s60, {F_3}
        v_lshrrev_b32 v28, 1, v2
        buffer_load_dword v28, v28, {R(WS_)}, s60 offen sc1""")
        vm.issue()
    if cfg.hidpt:
        A(f"""s_mul_i32 s60, s{sRT}, 229376
        s_lshl_b32 s62, s{sFT}, 12
        s_add_u32 s60, s60, s62
        s_add_u32 s60, s60, {WS_HID}""")
        for i in range(4):
            A(f"buffer_load_dwordx4 v[28:31], v2, {R(WS_)}, s60 offen offset:{1024*i}"); vm.issue()
    vm.wait(tkr[24])
    for it in range(21, 25): w1cons(it, slr[it])
    vm.wait(tkr[27])
    for it in range(25, 28): w1cons(it, slr[it])
    A("s_mov_b32 s62, 0xffff0000")
    pend = None
    def sdot(i):
        for t in range(2):
            for d in range(2):
                r = 32 + 4*i + 2*t + d
                A(f"v_dot2_f32_bf16 v{24+t}, v{r}, s15, v{24+t}\nv_dot2_f32_bf16 v{26+t}, v{r}, v{r}, v{26+t}")
    for i in range(7):
        vm.wait(tH_[i])
        lg.issue(); A(f"ds_read_b64_tr_b16 v[{32+4*i}:{33+4*i}], v9 offset:{HT+1024*i}")
        t = lg.issue(); A(f"ds_read_b64_tr_b16 v[{34+4*i}:{35+4*i}], v10 offset:{HT+1024*i}")
        if pend is not None:
            lg.wait(pend[1]); sdot(pend[0])
        pend = (i, t)
    tk2 = {}
    rest = list(range(NP, 14))
    slot = {ks: 2048*(i % 6) for i, ks in enumerate(rest)}
    if cfg.w2pre:
        for ks in rest[:6]: tk2[ks] = w2dma(slot[ks])
    lg.wait(pend[1]); sdot(pend[0])
    A(f"""s_lshl_b32 s58, s{sW}, 9
    s_add_u32 s58, s58, {ST}
    v_lshl_add_u32 v9, v1, 3, s58
    v_permlane32_swap_b32 v24, v25
    v_permlane32_swap_b32 v26, v27
    v_lshlrev_b32 v15, 3, v1
    v_add_u32 v15, {ST}, v15
    v_add_f32 v24, v24, v25
    v_add_f32 v25, v26, v27
    ds_write_b64 v9, v[24:25]
    s_waitcnt lgkmcnt(0)
    s_barrier""")
    stamp(10)
    ACC0, ACC1 = 32, 48
    BB = [64, 68, 72, 76]
    PF = cfg.pf
    def bread(it, areg, dst):
        bo = HT + (it % 7)*2048
        lg.issue(); A(f"ds_read_b64_tr_b16 v[{dst}:{dst+1}], v{areg} offset:{bo}")
        t = lg.issue(); A(f"ds_read_b64_tr_b16 v[{dst+2}:{dst+3}], v{areg} offset:{bo+1024}")
        return t
    ev = {}
    def at(g, f): ev.setdefault(g, []).append(f)
    trtok = {}
    def augchk():
        vm.wait(tAUG)
        A(f"""v_cmp_ne_u32 vcc, s{sTAG}, v19
        s_cbranch_vccz AUG_OK
        s_mov_b32 s60, 0
        AUG_RETRY:
        buffer_load_dwordx4 v[16:19], v2, {R(WS_)}, s2 offen sc1
        s_waitcnt vmcnt(0)
        v_cmp_ne_u32 vcc, s{sTAG}, v19
        s_cbranch_vccz AUG_OK
        s_add_u32 s60, s60, 1
        s_cmp_lt_u32 s60, {cfg.timeout}
        s_cbranch_scc1 AUG_RETRY
        AUG_OK:
        v_mov_b32 v19, 0""")
    at(20, augchk)
    for i, ks in enumerate(rest[:6]):
        if not cfg.w2pre: at(cfg.d0 + cfg.dstep*i, lambda ks=ks: tk2.__setitem__(ks, w2dma(slot[ks])))
    gtr = {}; gd = {}; post = []
    for i, ks in enumerate(rest):
        if i < 6: gd[ks] = -10 if cfg.w2pre else cfg.d0 + cfg.dstep*i
        else:
            prev = rest[i-6]
            gd[ks] = max(gtr[prev] + 2, cfg.d0 + cfg.dstep*(i - (6 if cfg.w2pre else 0)))
            def refill(prev=prev, nk=ks):
                lg.wait(trtok[prev]); tk2[nk] = w2dma(slot[nk])
            assert gd[ks] <= 55, (ks, gd[ks])
            at(gd[ks], refill)
        g = max(gd[ks] + cfg.trlat, cfg.tr0 + i)
        if ks >= NA: g = max(g, 28 + 2*(ks-NA) + 3)
        gtr[ks] = g
        def tr(ks=ks):
            vm.wait(tk2[ks]); trtok[ks] = w2tr(ks, slot[ks])
        if g <= 55: at(g, tr)
        else: post.append(tr)
    def cost(op):
        if callable(op): return 0
        return 2 if op.startswith(("v_exp", "v_rcp", "v_rsq")) else 1
    def run(op):
        if callable(op): op()
        else: A(op)
    hold = {}
    def finrd():
        for q in range(8):
            hold[q] = lg.issue(); A(f"ds_read_b64 v[{48+2*q}:{49+2*q}], v15 offset:{512*q}")
    fin = [finrd, lambda: lg.wait(hold[7])]
    for st_ in (2, 4, 8):
        for b in range(48, 64, 2*st_):
            fin += [f"v_add_f32 v{b}, v{b}, v{b+st_}", f"v_add_f32 v{b+1}, v{b+1}, v{b+st_+1}"]
    fin += [f"v_mul_f32 v48, {fhex(-1/448)}, v48", f"v_mul_f32 v49, {fhex(1/448)}, v49",
            "v_fma_f32 v49, -v48, v48, v49", "v_max_f32 v49, 0, v49", f"v_add_f32 v50, {fhex(1e-5)}, v49",
            "v_rsq_f32 v50, v50", "v_cvt_pk_bf16_f32 v20, v48, v48", "v_mul_f32 v51, v50, v50", "v_mul_f32 v51, v51, v49",
            f"v_add_f32 v51, {fhex(1e-5)}, v51", "v_rsq_f32 v51, v51", "v_lshlrev_b32 v52, 16, v20",
            "v_mul_f32 v50, v50, v51",
            "v_sub_f32 v52, v48, v52",
            "v_rcp_f32 v13, v50",
            f"v_mul_f32 v9, {fhex(GC1)}, v50", "v_mul_f32 v51, v50, v50",
            "v_cvt_pk_bf16_f32 v21, v52, v13", f"v_mul_f32 v51, {fhex(0.044715)}, v51", "v_and_b32 v52, s62, v21",
            "v_mul_f32 v11, v51, v9", "v_sub_f32 v52, v13, v52", "v_mov_b32 v10, v9", "v_mov_b32 v14, v13",
            "v_cvt_pk_bf16_f32 v22, v52, 0", "v_mov_b32 v12, v11",
            "v_permlane32_swap_b32 v9, v10", "v_permlane32_swap_b32 v13, v14", "v_permlane32_swap_b32 v11, v12"]
    def gelu_ops(acc, t, tset):
        k1, k2, sg = 9+t, 11+t, 13+t
        ops = []
        for g in range(4):
            T = 24 + 4*(g & 1); a = acc + 4*g
            for i in range(4): ops.append(f"v_mul_f32 v{T+i}, v{a+i}, v{a+i}")
            for i in range(4): ops.append(f"v_fma_f32 v{T+i}, v{T+i}, v{k2}, v{k1}")
            for i in range(4): ops.append(f"v_mul_f32 v{T+i}, v{T+i}, v{a+i}")
            for i in range(4): ops.append(f"v_exp_f32 v{T+i}, v{T+i}")
            for i in range(4): ops.append(f"v_fma_f32 v{T+i}, v{T+i}, v{sg}, v{sg}")
            for i in range(4): ops.append(f"v_rcp_f32 v{T+i}, v{T+i}")
            for i in range(4): ops.append(f"v_mul_f32 v{a+i}, v{a+i}, v{T+i}")
            o = acc + 8*(g >> 1) + 2*(g & 1)
            ops.append(f"v_cvt_pk_bf16_f32 v{o}, v{a}, v{a+1}")
            ops.append(f"v_cvt_pk_bf16_f32 v{o+1}, v{a+2}, v{a+3}")
            if g & 1:
                def st(g=g, o=o):
                    tset.append(vm.issue()); A(f"buffer_store_dwordx4 v[{o-2}:{o+1}], v2, {R(WS_)}, s61 offen offset:{2048*(g>>1)+1024*t} {cfg.sc_hid}")
                ops.append(st)
        return ops
    setup = [f"s_mul_i32 s61, s{sRT}, 229376", f"s_lshl_b32 s58, s{sFT}, 12", f"s_add_u32 s64, s61, {WS_HID}", "s_add_u32 s61, s64, s58",
             f"s_mul_i32 s59, s{sW}, {14*2048}", "s_add_u32 s64, s64, s59",
             f"s_lshl_b32 s58, s{sRT}, 9", f"s_add_u32 s63, s58, {F_3}", f"s_lshl_b32 s65, s{sFT}, 2", "s_add_u32 s65, s65, s63"]
    for o in setup: run(o) if False else None
    st0t = []
    def mloop(tile, acc, areg, fill, f0, fspan, g0):
        tB = {}
        tot = sum(cost(o) for o in fill); fi = 0; spent = 0
        def rd(it):
            if it % 7 == 0 and it > 0: A(f"v_add_u32 v{areg}, s{7+it//7}, v{areg}")
            tB[it] = bread(it, areg, BB[it % 4])
        for it in range(PF): rd(it)
        for it in range(28):
            if it % 2 == 0: lg.wait(tB[min(27, it+1)])
            A(f"v_mfma_f32_32x32x16_bf16 {v(acc,16)}, {v(W1R+4*it,4)}, {v(BB[it%4],4)}, {v(acc,16) if it else '0'}")
            if it + PF < 28: rd(it + PF)
            for f in ev.get(g0+it, []): f()
            if it >= f0:
                target = tot*(it+1-f0)/fspan
                while fi < len(fill) and spent < target:
                    run(fill[fi]); spent += cost(fill[fi]); fi += 1
        assert fi == len(fill)
        A(f"v_mfma_f32_32x32x16_bf16 {v(acc,16)}, v[16:19], v[20:23], {v(acc,16)}")
    assert PF == 3
    if cfg.sprio: A("s_setprio 3")
    if cfg.prio:
        A(f"s_cmp_lt_u32 s{sW}, 4\ns_cbranch_scc{0 if cfg.prio == 1 else 1} NOPRIO\ns_setprio 1\nNOPRIO:")
    mloop(0, ACC0, 4, fin + setup, cfg.fin0, cfg.finspan, 0)
    stamp(16, True)
    swp = ["v_permlane32_swap_b32 v20, v20", "v_permlane32_swap_b32 v21, v21", "v_permlane32_swap_b32 v22, v22"]
    def flag3(sreg):
        A(f"""s_mov_b64 exec, 1
        buffer_store_dword v15, v23, {R(WS_)}, {sreg} offen
        s_add_u32 {sreg}, {sreg}, {DUAL3}
        buffer_store_dword v15, v23, {R(WS_)}, {sreg} offen sc1
        s_mov_b64 exec, -1""")
        vm.issue(2)
    ptk = {}
    def p0i():
        A(f"s_mul_i32 s59, s{sW}, 28\nv_min_u32 v4, 6, v1\nv_lshl_add_u32 v4, v4, 2, s59")
        if cfg.nbp: ptk[0] = poll_issue(4, "s63", 0)
    at(cfg.p0iss, p0i)
    f0in = cfg.gspan + cfg.f0lat <= 27
    if f0in:
        def f0():
            vm.wait(st0t[-1]); flag3("s65")
            if cfg.sprio: A("s_setprio 2")
        at(28 + cfg.gspan + cfg.f0lat, f0)
    mloop(1, ACC1, 5, [f"v_mov_b32 v15, s{sTAG}"] + swp + gelu_ops(ACC0, 0, st0t), 2, cfg.gspan-2, 28)
    A(f"""s_andn2_b32 s2, s65, {DUAL3}
    s_add_u32 s2, s2, 256
    s_nop 6""")
    A("s_setprio 1" if cfg.sprio else "s_nop 0")
    stamp(11, True)
    BL = [192+4*i for i in range(16)]
    tH = {}; hs = {"cur": -1}
    def hload(t, ks):
        n = 14*t + ks; r = BL[n % 16]
        if hs["cur"] != ks//2:
            A(f"s_add_u32 s67, s64, s{PS[ks//2]}"); hs["cur"] = ks//2
        tH[n] = vm.issue(); A(f"buffer_load_dwordx4 v[{r}:{r+3}], v2, {R(WS_)}, s67 offen offset:{2048*(ks&1)+1024*t} sc1")
    st1t = []
    g1 = gelu_ops(ACC1, 1, st1t)
    for k_, f_ in enumerate(post): g1.insert(20 + 12*k_, f_)
    nl = [0]
    fpos = int(len(g1)*cfg.f0pos); ppos = int(len(g1)*cfg.p0pos)
    for i, o in enumerate(g1):
        if i == fpos and not f0in:
            vm.wait(st0t[-1]); flag3("s65")
        if i == ppos and cfg.nb0 > 0:
            stamp(19, True)
            if cfg.nbp: poll_check(ptk[0], 4, "s63", 0)
            else: poll(4, "s63", vdat=0, dual=DUAL3); sync_vm()
            stamp(17, True)
        if cfg.nb0 > 0 and i >= ppos and (i - ppos) % cfg.lsp == 0 and nl[0] < cfg.nb0:
            hload(0, nl[0]); nl[0] += 1
        run(o)
    if cfg.sprio: A("s_setprio 0")
    stamp(18, True)
    if cfg.nb0 > 0:
        NI = min(14, nl[0] + cfg.lead)
        for ks in range(nl[0], NI): hload(0, ks)
        nl[0] = NI
        if cfg.f1k < 0: vm.wait(st1t[-1]); flag3("s2")
    else:
        vm.waitall(); flag3("s2")
        poll(4, "s63", vdat=0, dual=DUAL3); sync_vm()
        for ks in range(14): hload(0, ks)
        nl[0] = 14
    lg.waitall()
    A(f"s_andn2_b32 s63, s63, {DUAL3}\ns_add_u32 s63, s63, 256\nv_mov_b32 v6, v4\ns_lshl_b32 s59, s{sW}, 6\nv_add_u32 v0, s59, v1")
    stamp(12)
    G2A = {(0, 0): 32, (1, 0): 64, (0, 1): 48, (1, 1): 16}
    A(f"""s_lshl_b32 s61, s{sFS}, 3
    s_sub_u32 s58, {W2B}, s{sSTG}
    s_add_u32 s61, s61, s{sW}
    s_lshl_b32 s61, s61, 10
    s_sub_u32 s61, s61, s{sSTG}
    v_add_u32 v10, s61, v7
    v_add_u32 v11, s61, v8
    ds_read_b64_tr_b16 v[24:25], v10 offset:{HT}
    ds_read_b64_tr_b16 v[26:27], v11 offset:{HT}
    v_and_b32 v7, 31, v1
    v_lshrrev_b32 v8, 5, v1
    v_lshlrev_b32 v8, 3, v8
    v_lshl_add_u32 v9, v7, 4, v8
    v_add_u32 v9, s{sSTG}, v9
    v_lshl_add_u32 v8, v7, 7, v8
    v_add_u32 v8, s{sSTG}, v8
    v_and_b32 v7, 7, v1
    s_waitcnt lgkmcnt(0)
    ds_write_b64 v9, v[24:25] offset:8192
    ds_write_b64 v9, v[26:27] offset:{8192+512}""")
    lg.issue(2)
    tb2 = {}
    A(f"""v_and_b32 v14, 15, v0
    s_lshl_b32 s59, s{sFS}, 7
    v_lshl_add_u32 v3, v14, 3, s59""")
    tb2[0] = vm.issue(); A(f"buffer_load_dwordx2 v[4:5], v3, {R(SM_)}, 0 offen")
    nxt1 = [0]
    def more1(ks_done, maxn=99):
        k = 0
        while nxt1[0] < 14 and 14 + nxt1[0] - 16 < ks_done and k < maxn:
            hload(1, nxt1[0]); nxt1[0] += 1; k += 1
    for ks in range(14):
        if ks == cfg.f1k and cfg.nb0 > 0:
            vm.wait(st1t[-1]); flag3("s2")
        if ks == cfg.p1iss and cfg.nbp and cfg.p1 < 14: ptk[1] = poll_issue(6, "s63", 12)
        if ks == cfg.p1:
            stamp(21, True)
            if cfg.nbp: poll_check(ptk[1], 6, "s63", 12)
            else: poll(6, "s63", vdat=12, dual=DUAL3); sync_vm()
            stamp(22, True)
        if ks >= cfg.p1: more1(ks, cfg.lead1 if ks == cfg.p1 else 2)
        if nl[0] < 14: hload(0, nl[0]); nl[0] += 1
        assert nl[0] == 14 or ks < cfg.p1
        vm.wait(tH[ks])
        for dt in range(2):
            a = G2A[dt, 0]
            A(f"v_mfma_f32_32x32x16_bf16 {v(a,16)}, {v(w2reg(ks)+4*dt,4)}, {v(BL[ks%16],4)}, {v(a,16) if ks else '0'}")
    if cfg.p1 >= 14:
        poll(6, "s63", vdat=12, dual=DUAL3); sync_vm()
    more1(14, cfg.lead1 if cfg.p1 >= 14 else 2)
    stamp(13, True)
    def pwrite(t, regs):
        ops = []
        for dt in range(2):
            for a in range(4):
                r = G2A[dt, t]+4*a; pc = 4*dt + a
                if t == 0: ops += [f"v_xor_b32 v12, {pc}, v7", f"v_lshl_add_u32 v{80+pc}, v12, 4, v8"]
                ops += [f"v_cvt_pk_bf16_f32 v{r}, v{r}, v{r+1}", f"v_cvt_pk_bf16_f32 v{r+1}, v{r+2}, v{r+3}"]
                def w(r=r, pc=pc): lg.issue(); A(f"ds_write_b64 v{80+pc}, v[{r}:{r+1}] offset:{4096*t}")
                ops.append(w)
        return ops
    rdaddr = [f"v_lshrrev_b32 v13, 4, v0", "v_bfe_u32 v14, v0, 1, 3", "v_and_b32 v15, 7, v13", "v_xor_b32 v15, v15, v14",
              "v_lshlrev_b32 v10, 7, v13", "v_lshl_add_u32 v10, v15, 4, v10", "v_and_b32 v15, 1, v0", "v_lshlrev_b32 v15, 3, v15",
              f"v_add3_u32 v10, v10, v15, s58", "v_mul_u32_u24 v14, 12288, v14", "v_lshl_add_u32 v11, v13, 4, v15", f"v_add3_u32 v11, v11, v14, s58",
              "v_add_u32 v9, 49152, v10",
              f"s_lshl_b32 s59, s{sRT}, 6", "v_add_u32 v13, s59, v13", "v_mul_u32_u24 v13, 896, v13", "v_add_u32 v13, v13, v3"]
    def reduce_ops(t, RB, AC, dot):
        tk_ = {}
        def bar():
            lg.waitall(); A("s_barrier")
            for i in range(8):
                tk_[i] = lg.issue(); A(f"ds_read_b64 v[{RB+2*i}:{RB+2*i+1}], v{10 if i < 4 else 9} offset:{12288*(i&3)+4096*t}")
            tk_[8] = lg.issue(); A(f"ds_read_b64 v[70:71], v11 offset:{8192+512*t}")
        ops = [bar, lambda: vm.wait(tb2[0])]
        ops += [f"v_lshlrev_b32 v{AC}, 16, v4", f"v_and_b32 v{AC+1}, s62, v4", f"v_lshlrev_b32 v{AC+2}, 16, v5", f"v_and_b32 v{AC+3}, s62, v5"]
        for i in range(9):
            if i % 3 == 0: ops.append(lambda i=i: lg.wait(tk_[i+2]))
            for d in range(2):
                r = RB+2*i+d if i < 8 else 70+d
                if dot:
                    ops += [f"v_dot2_f32_bf16 v{AC+2*d}, v{r}, s60, v{AC+2*d}", f"v_dot2_f32_bf16 v{AC+2*d+1}, v{r}, s61, v{AC+2*d+1}"]
                else:
                    ops += [f"v_lshlrev_b32 v{AC+4}, 16, v{r}", f"v_and_b32 v{r}, s62, v{r}", f"v_add_f32 v{AC+2*d}, v{AC+2*d}, v{AC+4}", f"v_add_f32 v{AC+2*d+1}, v{AC+2*d+1}, v{r}"]
        if dot: ops.append("s_nop 2")
        ops += [f"v_cvt_pk_bf16_f32 v{AC}, v{AC}, v{AC+1}", f"v_cvt_pk_bf16_f32 v{AC+1}, v{AC+2}, v{AC+3}"]
        def st():
            vm.issue(); A(f"buffer_store_dwordx2 v[{AC}:{AC+1}], v13, {R(O_)}, s59 offen")
        ops += [f"s_mov_b32 s59, {32*896*t}", st]
        return ops
    fill = [f"s_mov_b32 s58, {W2B}"] + rdaddr + pwrite(0, None) + reduce_ops(0, 32, 64, False)
    tot = sum(cost(o) for o in fill); fi = 0; spent = 0
    for ks in range(14):
        more1(14+ks, 2)
        vm.wait(tH[14+ks])
        for dt in range(2):
            a = G2A[dt, 1]
            A(f"v_mfma_f32_32x32x16_bf16 {v(a,16)}, {v(w2reg(ks)+4*dt,4)}, {v(BL[(14+ks)%16],4)}, {v(a,16) if ks else '0'}")
            target = tot*(2*ks+dt+1)/27
            while fi < len(fill) and spent < target:
                run(fill[fi]); spent += cost(fill[fi]); fi += 1
    assert fi == len(fill)
    stamp(14, True)
    A("s_mov_b32 s60, 0x3f80\ns_mov_b32 s61, 0x3f800000\ns_nop 7")
    for o in pwrite(1, None) + reduce_ops(1, 32, 64, True): run(o)
    if cfg.stamp:
        A("""s_waitcnt vmcnt(0)
        s_memrealtime s[98:99]
        s_memtime s[58:59]
        s_waitcnt lgkmcnt(0)
        s_mov_b32 s97, s98
        s_sub_u32 s58, s58, s100
        v_mov_b32 v32, s58""")
        for i in range(28): A(f"v_mov_b32 v{4+i}, s{70+i}")
        A(f"""s_lshl_b32 s58, s{sM}, 3
        s_add_u32 s58, s58, s{sXG}
        s_lshl_b32 s58, s58, 3
        s_add_u32 s58, s58, s{sW}
        s_lshl_b32 s58, s58, 7
        s_add_u32 s58, s58, {WS_STAMP}
        v_mov_b32 v2, 0
        s_mov_b64 exec, 1""")
        for i in range(8): A(f"buffer_store_dwordx4 v[{4+4*i}:{7+4*i}], v2, {R(WS_)}, s58 offen offset:{16*i}")
    if cfg.pad:
        A(f"""s_waitcnt vmcnt(0)
        PADL:
        s_memrealtime s[98:99]
        s_waitcnt lgkmcnt(0)
        s_sub_u32 s98, s98, s96
        s_cmp_lt_u32 s98, {cfg.pad}
        s_cbranch_scc1 PADL""")
    A("s_endpgm")
    A(f"""SLOW1:
    s_mov_b32 s33, {WS_T2}
    s_mov_b32 s34, {WS_T2+8192}
    buffer_store_dwordx4 v[32:35], v23, {R(WS_)}, s33 offen sc1
    buffer_store_dwordx4 v[36:39], v23, {R(WS_)}, s34 offen sc1
    v_mov_b32 v4, {FL+52}
    s_waitcnt vmcnt(0)
    s_barrier
    s_cmp_lg_u32 s{sW}, {cfg.pollw}
    s_cbranch_scc1 SLOW1_W
    s_lshl_b32 s33, s{sM}, 2
    s_add_u32 s33, s33, s61
    s_mov_b64 exec, 1
    buffer_store_dword v18, v6, {R(WS_)}, s33 offen offset:{DUAL} sc1
    s_mov_b64 exec, -1
    s_mov_b32 s60, 0
    SLOW1_P:
    buffer_load_dword v15, v22, {R(WS_)}, s61 offen sc1
    buffer_load_dword v5, v22, {R(WS_)}, s61 offen offset:{DUAL} sc1
    s_waitcnt vmcnt(0)
    v_mov_b32 v7, 0
    v_cmp_ne_u32 vcc, s32, v15
    s_cbranch_vccz SLOW1_D
    v_mov_b32 v7, {WS_T2}
    v_cmp_ne_u32 vcc, s{sTAG}, v5
    s_cbranch_vccz SLOW1_D
    s_sleep 4
    s_add_u32 s60, s60, 1
    s_cmp_lt_u32 s60, {cfg.timeout}
    s_cbranch_scc1 SLOW1_P
    SLOW1_D:
    ds_write_b32 v4, v7
    s_waitcnt lgkmcnt(0)
    SLOW1_W:
    s_barrier
    ds_read_b32 v7, v4
    s_waitcnt lgkmcnt(0)
    v_readfirstlane_b32 s33, v7
    s_add_u32 s2, s2, s33
    s_nop 3
    buffer_load_dwordx4 v2, {R(WS_)}, s2 offen sc1 lds
    s_cmp_lt_u32 s{sW}, 4
    s_cbranch_scc1 LO_BACK
    s_add_u32 s62, s62, s33
    s_branch HI_BACK""")
    A(f"""XSTAT:
    s_lshl_b32 s63, s2, 3
    s_add_u32 s63, s63, s{sW}
    s_mul_i32 s68, s63, 896
    v_add_u32 v7, s68, v2
    v_cmp_gt_u32 vcc, 56, v1
    v_mov_b32 v9, 0x80000000
    s_mov_b32 s15, 0x3f803f80
    v_cndmask_b32 v7, v9, v7, vcc
    v_mov_b32 v28, 0
    v_mov_b32 v29, 0
    buffer_load_dwordx4 v[16:19], v7, {R(X_)}, 0 offen""")
    srd(A, WS_, 12, 13, WS_BYTES)
    A(f"""s_load_dwordx4 s[4:7], s[0:1], 56
    s_load_dwordx4 s[8:11], s[0:1], 72
    s_load_dwordx2 s[64:65], s[0:1], 88
    v_mov_b32 v6, 0
    s_waitcnt vmcnt(0) lgkmcnt(0)
    s_add_u32 s{sTAG}, s{sTAG}, {TAGK}""")
    mlp_ids(); bias_loads(True)
    rowstat(A)
    mlp_setup(True)
    A(f"""s_cmp_ge_u32 s{sM}, 28
    s_cbranch_scc1 HELPER""")
    for it in range(NSL): w1dma(it)
    A(f"s_lshl_b32 s59, s{sW}, 13\ns_waitcnt vmcnt(0)")
    common_setup()
    A("RING7:")
    sync_vm()
    A(f"s_sub_u32 s58, s59, s{sSTG}\nv_add_u32 v13, s58, v12")
    tk7, sl7 = w1ring(lambda e: e*1024)
    A(f"s_cmp_ge_u32 s{sM}, 7\ns_cbranch_scc1 RING_J\ns_waitcnt vmcnt(0)\nv_mov_b32 v20, 0")
    sync_vm()
    for it in range(21, 28): w1cons(it, sl7[it])
    lg.waitall()
    for i in range(112): A(f"v_dot2_f32_bf16 v20, v{W1R+i}, s15, v20")
    A(f"""s_nop 2
    v_mov_b32 v19, v20
    v_lshlrev_b32 v17, 16, v31
    v_cmp_gt_u32 vcc, 32, v1
    v_permlane32_swap_b32 v20, v19
    s_lshl_b32 s2, s{sFT}, 10
    s_add_u32 s2, s2, {WS_AUG}
    v_add_f32 v16, v20, v19
    v_cvt_pk_bf16_f32 v19, v16, v17
    v_lshlrev_b32 v20, 16, v19
    v_sub_f32 v20, v16, v20
    v_cvt_pk_bf16_f32 v16, v16, v20
    v_lshrrev_b32 v18, 16, v17
    v_cndmask_b32 v16, 0, v16, vcc
    v_cndmask_b32 v17, 0, v19, vcc
    v_cndmask_b32 v18, 0, v18, vcc
    v_mov_b32 v19, s{sTAG}
    buffer_store_dwordx4 v[16:19], v2, {R(WS_)}, s2 offen sc1
    s_branch RING_J""")
    A(f"""HELPER:
    v_mov_b32 v6, 0
    s_cmp_lt_u32 s{sW}, 4
    s_cbranch_scc1 END
    s_cmp_eq_u32 s{sM}, 28
    s_cbranch_scc1 LEADER""")
    if cfg.stream:
        A(f"""s_sub_u32 s61, s{sM}, 29
        s_lshl_b32 s61, s61, 2
        s_and_b32 s59, s{sW}, 3
        s_add_u32 s61, s61, s59
        HSTREAM:
        s_lshr_b32 s58, s61, 3
        s_mul_i32 s58, s58, {16*896}
        s_and_b32 s59, s61, 7
        s_mul_i32 s59, s59, {224*896}
        s_add_u32 s58, s58, s59""")
        for i in range(14):
            A(f"buffer_load_dwordx4 v[24:27], v2, {R(W2_)}, s58 offen\ns_add_u32 s58, s58, 1024")
        A(f"""s_waitcnt vmcnt(14)
        s_add_u32 s61, s61, 12
        s_cmp_lt_u32 s61, 112
        s_cbranch_scc1 HSTREAM""")
    A(f"""s_endpgm
    LEADER:
    s_cmp_lg_u32 s{sW}, 4
    s_cbranch_scc1 END
    v_lshlrev_b32 v4, 6, v1
    s_lshl_b32 s58, s{sXG}, 14
    s_add_u32 s58, s58, {F_2}
    s_add_u32 s59, s58, {56*64}
    s_add_u32 s61, s58, {2*56*64}
    s_add_u32 s62, s58, {3*56*64}
    s_mov_b32 s60, 0
    s_mov_b32 exec_hi, 0x00ffffff
    LPOLL:
    buffer_load_dword v24, v4, {R(WS_)}, s58 offen sc1
    buffer_load_dword v25, v4, {R(WS_)}, s59 offen sc1
    buffer_load_dword v26, v4, {R(WS_)}, s61 offen sc1
    buffer_load_dword v27, v4, {R(WS_)}, s62 offen sc1
    s_waitcnt vmcnt(0)
    v_cmp_ne_u32 vcc, s{sTAG}, v24
    v_cmp_ne_u32 s[64:65], s{sTAG}, v25
    s_or_b64 vcc, vcc, s[64:65]
    v_cmp_ne_u32 s[64:65], s{sTAG}, v26
    s_or_b64 vcc, vcc, s[64:65]
    v_cmp_ne_u32 s[64:65], s{sTAG}, v27
    s_or_b64 vcc, vcc, s[64:65]
    s_cmp_eq_u64 vcc, 0
    s_cbranch_scc1 LGO
    s_add_u32 s60, s60, 1
    s_cmp_lt_u32 s60, {cfg.timeout}
    s_cbranch_scc1 LPOLL
    LGO:
    s_lshl_b32 s58, s{sXG}, 7
    s_add_u32 s58, s58, {F_GO}
    s_mov_b64 exec, 1
    buffer_store_dword v18, v6, {R(WS_)}, s58 offen
    buffer_store_dword v18, v6, {R(WS_)}, s58 offen offset:{DUAL} sc1
    s_cmp_lg_u32 s{sXG}, 0
    s_cbranch_scc1 END
    s_mov_b32 s58, {F_EP}
    buffer_store_dword v18, v6, {R(WS_)}, s58 offen sc1
    END:
    s_endpgm""")
    return A.text()

def build(cfg):
    hdr = open("sequential_preLN__ssm_conv_h3__mixer_channel_mlp__prompt.s.ref").read().split("; Override launch")[0]
    out = hdr + f"; @launch grid=(256,1,1) block=(512,1,1) lds={LDS_BYTES}\n"
    out += '.amdgcn_target "amdgcn-amd-amdhsa--gfx950"\n'
    out += kernel_header(NAME) + "CODE_BEG:\n" + gen(cfg) + "CODE_END:\n" + kernel_desc(NAME, 256)
    return out

if __name__ == "__main__":
    cfg = Cfg()
    path = sys.argv[1]
    for a in sys.argv[2:]:
        k, val = a.split("=")
        old = getattr(cfg, k)
        setattr(cfg, k, (val == "1") if isinstance(old, bool) else type(old)(val))
    open(path, "w").write(build(cfg))
```
